```python
import torch

def _softmax(x, axis=-1):
    return torch.softmax(x, dim=axis)
def _gelu(x):
    return torch.nn.functional.gelu(x, approximate="tanh")
def _silu(x):
    return torch.nn.functional.silu(x)
def _sigmoid(x):
    return torch.sigmoid(x)
def _layernorm(x, axis=-1, eps=1e-5):
    m = x.mean(dim=axis, keepdim=True)
    v = x.var(dim=axis, keepdim=True, unbiased=False)
    return (x - m) / torch.sqrt(v + eps)
def _scatter_add(tgt, idx, src, axis=0):
    return tgt.clone().index_add_(axis, idx, src)
def _segment_sum(src, seg, n):
    out = torch.zeros((n,) + src.shape[1:], dtype=src.dtype)
    return out.index_add_(0, seg, src)
def _pad(x, pw):
    flat = tuple(v for pair in reversed(pw) for v in pair)
    return torch.nn.functional.pad(x, flat)

kernel_name = 'recurrent_scan__linear_kernel_hedgehog__mixer_s_mlp__prompt'

def setup_inputs():

    _w = (lambda a: (lambda t: t.to(torch.bfloat16) if t.is_floating_point() else t)(torch.as_tensor(a)))
    def _A_setup():
        B, S, D, H = 1, 2048, 448, 16
        Dh = D // H
        return {
            "x": _w((lambda *s: torch.randn(*s, dtype=torch.bfloat16) * 0.05)(B, S, D)),
            "wqkv": _w((lambda *s: torch.randn(*s, dtype=torch.bfloat16) * 0.2)(D, 3 * D)),
            "w_phi": _w((lambda *s: torch.randn(*s, dtype=torch.bfloat16) * 0.2)(H, Dh, Dh) * (Dh ** -0.5)),
            "wo": _w((lambda *s: torch.randn(*s, dtype=torch.bfloat16) * 0.05)(D, D)),
        }
    _A_in = _A_setup()

    def _B_setup():
        B, S, D, F = 1, 2048, 448, 1792
        return {
            "x":  _w((lambda *s: torch.randn(*s, dtype=torch.bfloat16) * 0.05)(B, S, D)),
            "w1": _w((lambda *s: torch.randn(*s, dtype=torch.bfloat16) * 0.8)(D, D) * (D ** -0.5)),
            "w2": _w((lambda *s: torch.randn(*s, dtype=torch.bfloat16) * 0.8)(D, D) * (D ** -0.5)),
            "w3": _w((lambda *s: torch.randn(*s, dtype=torch.bfloat16) * 0.8)(D, F) * (D ** -0.5)),
            "w4": _w((lambda *s: torch.randn(*s, dtype=torch.bfloat16) * 0.8)(F, D) * (F ** -0.5)),
        }
    _B_in = _B_setup()

    return {
        "A_x": _A_in["x"],
        "A_wqkv": _A_in["wqkv"],
        "A_w_phi": _A_in["w_phi"],
        "A_wo": _A_in["wo"],
        "B_x": _B_in["x"],
        "B_w1": _B_in["w1"],
        "B_w2": _B_in["w2"],
        "B_w3": _B_in["w3"],
        "B_w4": _B_in["w4"],
    }

def reference(A_x, A_wqkv, A_w_phi, A_wo, B_x, B_w1, B_w2, B_w3, B_w4):
    def _A_ref(x, wqkv, w_phi, wo):
        B, S, D = x.shape
        H = 16; Dh = D // H
        qkv = (lambda x, *d: x.permute(*d))((x @ wqkv).reshape(B, S, 3, H, Dh), 2, 0, 3, 1, 4)
        q, k, v = qkv[0], qkv[1], qkv[2]
        pq = torch.einsum("bhsd,hdf->bhsf", q, w_phi)
        pk = torch.einsum("bhsd,hdf->bhsf", k, w_phi)
        phi_q = torch.concatenate([_softmax(pq, axis=-1), _softmax(-pq, axis=-1)], axis=-1)
        phi_k = torch.concatenate([_softmax(pk, axis=-1), _softmax(-pk, axis=-1)], axis=-1)
        kv = torch.einsum("bhsf,bhsd->bhfd", phi_k, v)
        z  = torch.einsum("bhsf->bhf", phi_k)
        num = torch.einsum("bhqf,bhfd->bhqd", phi_q, kv)
        den = torch.einsum("bhqf,bhf->bhq", phi_q, z)[..., None] + 1e-6
        o = num / den
        return (lambda x, *d: x.permute(*d))(o, 0, 2, 1, 3).reshape(B, S, D) @ wo

    def _B_ref(x, w1, w2, w3, w4):
        B, S, D = x.shape
        h = _gelu(_layernorm(x, axis=-1) @ w1)
        c = D // 4
        g0 = _pad(h[:, :, 0*c:1*c], ((0, 0), (1, 0), (0, 0)))[:, :S, :]
        g1 = _pad(h[:, :, 1*c:2*c], ((0, 0), (0, 1), (0, 0)))[:, 1:, :]
        g2 = _pad(h[:, :, 2*c:3*c], ((0, 0), (2, 0), (0, 0)))[:, :S, :]
        g3 = _pad(h[:, :, 3*c:   ], ((0, 0), (0, 2), (0, 0)))[:, 2:, :]
        hs = torch.concatenate([g0, g1, g2, g3], axis=-1) @ w2
        x1 = x + hs
        h2 = _gelu(_layernorm(x1, axis=-1) @ w3) @ w4
        return x1 + h2

    x = A_x
    xn = _layernorm(x, axis=-1)
    s = _A_ref(xn, A_wqkv, A_w_phi, A_wo)
    g = _silu(_B_ref(xn, B_w1, B_w2, B_w3, B_w4))
    return x + s * g
```

```python
import re, copy

REG_RE = re.compile(r'\b([vas])\[(\d+):(\d+)\]|\b([vas])(\d+)\b|\b(vcc|exec|m0|scc)\b')

def regs_of(tok):
    out = []
    for m in REG_RE.finditer(tok):
        if m.group(1):
            out += [(m.group(1), i) for i in range(int(m.group(2)), int(m.group(3)) + 1)]
        elif m.group(4):
            out.append((m.group(4), int(m.group(5))))
        else:
            out.append((m.group(6), 0))
    return out

TRANS = ('v_exp_f32', 'v_log_f32', 'v_rcp_f32', 'v_rsq_f32', 'v_sqrt_f32', 'v_sin_f32', 'v_cos_f32')
NODST_S = ('s_cmp', 's_waitcnt', 's_barrier', 's_nop', 's_branch', 's_cbranch', 's_endpgm', 's_setprio', 's_sleep', 's_bitcmp')

class Ins:
    __slots__ = ('text', 'op', 'dst', 'src', 'kind', 'passes', 'srcC', 'srcAB', 'ws', 'wide_store_data')

def parse(text):
    t = text.split(';')[0].strip()
    parts = t.split(None, 1)
    op = parts[0]
    rest = parts[1] if len(parts) > 1 else ''
    ops = [o.strip() for o in rest.split(',')] if rest else []
    I = Ins(); I.text = text; I.op = op; I.dst = []; I.src = []; I.passes = 0; I.srcC = []; I.srcAB = []; I.ws = 1; I.wide_store_data = []
    if op.startswith('v_mfma'):
        I.kind = 'mfma'; I.passes = 8 if '32x32x16' in op else 4
        assert '32x32x16_bf16' in op or '16x16x32_bf16' in op, op
        I.dst = regs_of(ops[0]); I.srcAB = regs_of(ops[1]) + regs_of(ops[2]); I.srcC = regs_of(ops[3]); I.src = I.srcAB + I.srcC
    elif op.startswith('v_'):
        I.kind = 'valu'
        assert not op.startswith('v_cmpx'), 'no cmpx'
        I.dst = regs_of(ops[0])
        for o in ops[1:]: I.src += regs_of(o)
        if op.startswith(('v_permlane', 'v_swap')):
            I.dst = regs_of(ops[0]) + regs_of(ops[1]); I.src = list(I.dst)
        if op.startswith(('v_fmac', 'v_dot2c', 'v_pk_fmac', 'v_writelane')) or '_dpp' in op or 'sdwa' in op:
            I.src += I.dst
        if op.startswith(('v_add_co', 'v_sub_co', 'v_addc_co')):
            I.dst += regs_of(ops[1])
    elif op.startswith('ds_'):
        I.kind = 'ds'
        if op.startswith(('ds_read', 'ds_bpermute', 'ds_permute', 'ds_swizzle')):
            I.dst = regs_of(ops[0])
            for o in ops[1:]: I.src += regs_of(o)
        else:
            for o in ops: I.src += regs_of(o)
    elif op.startswith(('buffer_', 'global_')):
        I.kind = 'vmem'
        lds = re.search(r'\blds\b', rest) is not None or '_lds_' in op
        if 'load' in op and not lds:
            I.dst = regs_of(ops[0])
            for o in ops[1:]: I.src += regs_of(o)
            if 'd16' in op: I.src += I.dst
        elif 'atomic' in op and re.search(r'\bsc0\b', rest):
            I.dst = regs_of(ops[0])
            for o in ops: I.src += regs_of(o)
        else:
            for o in ops: I.src += regs_of(o)
            if lds: I.src.append(('m0', 0)); I.kind = 'dma'
            if 'store' in op and ('x3' in op or 'x4' in op):
                I.wide_store_data = regs_of(ops[0]) if op.startswith('buffer_') else regs_of(ops[1])
    elif op.startswith(('s_load', 's_memtime', 's_memrealtime', 's_buffer_load')):
        I.kind = 'smem'; I.dst = regs_of(ops[0])
        for o in ops[1:]: I.src += regs_of(o)
    elif op.startswith('s_'):
        I.kind = 'salu'
        if op.startswith(NODST_S):
            for o in ops: I.src += regs_of(o)
            if op == 's_nop': I.ws = int(ops[0], 0) + 1
        else:
            I.dst = regs_of(ops[0])
            for o in ops[1:]: I.src += regs_of(o)
            if 'saveexec' in op: I.dst.append(('exec', 0))
    else:
        raise ValueError('unknown op ' + op)
    return I

class State:
    def __init__(self):
        self.hist = []
        self.vm = []
        self.lg = []

class Asm:
    def __init__(self):
        self.out = []
        self.st = State()
        self.saved = {}
        self.nv = 0; self.ns = 0; self.na = 0
        self.maxv = 0; self.maxs = 0; self.maxa = -1
        self.nops = 0
    def raw(self, s): self.out.append(s)
    def comment(self, s): self.out.append('    ; ' + s)
    def _push(self, I):
        self.out.append('    ' + I.text)
        self.st.hist.append(I)
        if len(self.st.hist) > 24: self.st.hist.pop(0)
        for k, n in I.dst + I.src:
            if k == 'v': self.maxv = max(self.maxv, n)
            elif k == 's': self.maxs = max(self.maxs, n)
            elif k == 'a': self.maxa = max(self.maxa, n)
    def _need_ws(self, I):
        need = 0; dist = 0
        rd = set(I.src); wr = set(I.dst); touch = rd | wr
        for P in reversed(self.st.hist):
            pd = set(P.dst)
            req = 0
            if P.kind == 'valu':
                pv = {r for r in pd if r[0] in 'va'}
                ps = {r for r in pd if r[0] == 's' or r[0] == 'vcc'}
                if I.kind == 'mfma' and pv & rd: req = max(req, 2)
                if I.kind == 'valu':
                    if P.op.startswith(TRANS) and pv & rd and not I.op.startswith(TRANS): req = max(req, 1)
                    if P.op.startswith(TRANS) and pv & rd: req = max(req, 1)
                    if (I.op.startswith('v_permlane') or '_dpp' in I.op) and pv & rd: req = max(req, 2)
                    if I.op.startswith(('v_readfirstlane', 'v_readlane')) and pv & rd: req = max(req, 1)
                    if ps & rd: req = max(req, 4 if I.op.startswith(('v_readlane', 'v_writelane')) else 2)
                    if P.op.startswith('v_dot2') and pv & touch and not (I.op == P.op): req = max(req, 3)
                    if ('sdwa' in P.op or 'op_sel:' in P.text) and pv & touch: req = max(req, 1)
                if P.op.startswith('v_dot2') and I.kind != 'valu' and pv & touch: req = max(req, 3)
                if I.kind in ('vmem', 'dma') and ps & rd: req = max(req, 5)
                if I.kind in ('salu', 'smem') and ps & rd: req = max(req, 2)
            elif P.kind == 'mfma':
                big = P.passes == 8
                if I.kind == 'mfma':
                    if pd & set(I.srcAB): req = max(req, 12 if big else 8)
                    if pd & set(I.srcC):
                        if not (I.srcC == P.dst and I.passes == P.passes): req = max(req, 10 if big else 6)
                    elif pd & wr: req = max(req, 12 if big else 8)
                elif I.kind in ('valu', 'vmem', 'ds', 'dma'):
                    if pd & touch: req = max(req, 12 if big else 8)
                    if I.kind == 'valu' and set(P.srcC) & wr: req = max(req, 7 if big else 3)
                    if I.kind in ('vmem', 'ds') and set(P.srcC) & wr: req = max(req, 7 if big else 3)
            elif P.kind == 'salu':
                if ('m0', 0) in pd and I.kind == 'dma': req = max(req, 1)
            if P.wide_store_data and set(P.wide_store_data) & wr: req = max(req, 2)
            if req - dist > need: need = req - dist
            dist += P.ws
            if dist >= 20: break
        return need
    def _waits(self, I):
        touch = set(I.src) | set(I.dst)
        vmn = None; lgn = None
        for i, e in enumerate(self.st.vm):
            if e[0] & touch: vmn = len(self.st.vm) - 1 - i
        for i, e in enumerate(self.st.lg):
            if e[0] & touch: lgn = len(self.st.lg) - 1 - i
        if lgn is not None and any(e[2] for e in self.st.lg): lgn = 0
        if vmn is not None or lgn is not None: self.wait(vm=vmn, lg=lgn)
    def wait(self, vm=None, lg=None):
        parts = []
        if vm is not None:
            vm = min(vm, 63)
            if vm < len(self.st.vm):
                parts.append(f'vmcnt({vm})'); self.st.vm = self.st.vm[len(self.st.vm) - vm:] if vm else []
        if lg is not None:
            lg = min(lg, 15)
            if any(e[2] for e in self.st.lg): lg = 0
            if lg < len(self.st.lg):
                parts.append(f'lgkmcnt({lg})'); self.st.lg = self.st.lg[len(self.st.lg) - lg:] if lg else []
        if parts: self._push(parse('s_waitcnt ' + ' '.join(parts)))
    def wait_tag(self, tag):
        n = None
        for i, e in enumerate(self.st.vm):
            if e[1] == tag: n = len(self.st.vm) - 1 - i
        if n is not None: self.wait(vm=n)
    def __call__(self, text, tag=None):
        for line in text.strip().split('\n'):
            line = line.strip()
            if not line or line.startswith(';'): continue
            self.ins(line, tag)
    def ins(self, text, tag=None):
        I = parse(text)
        assert I.op != 's_waitcnt', 'use wait()'
        self._waits(I)
        n = self._need_ws(I)
        while n > 0:
            k = min(n, 16); self._push(parse(f's_nop {k-1}')); n -= k; self.nops += 1
        self._push(I)
        if I.kind in ('vmem', 'dma'): self.st.vm.append((set(I.dst), tag))
        elif I.kind == 'ds': self.st.lg.append((set(I.dst), tag, False))
        elif I.kind == 'smem': self.st.lg.append((set(I.dst), tag, True))
    def branch(self, op, label):
        self.ins(f'{op} {label}')
        self.saved.setdefault(label, []).append(copy.deepcopy(self.st))
    def label(self, label, fallthrough):
        states = self.saved.get(label, [])
        if fallthrough:
            for s in states:
                if [e[1] for e in s.vm] != [e[1] for e in self.st.vm] or len(s.vm) != len(self.st.vm) or len(s.lg) != len(self.st.lg):
                    raise RuntimeError(f'label {label}: mismatched outstanding queues; drain before merging')
            self.out.append(f'{label}:')
            for s in states:
                self.st.hist = self.st.hist
            self._merge_hist = [s.hist for s in states]
            for s in states:
                d = 0; worst = 0
                for P in reversed(s.hist):
                    r = 12 if P.kind == 'mfma' else (5 if P.kind == 'valu' else 2 if P.wide_store_data else 0)
                    worst = max(worst, r - d); d += P.ws
                if worst > 0: self._push(parse(f's_nop {worst-1}'))
        else:
            assert len(states) >= 1, label
            self.st = copy.deepcopy(states[0])
            for s in states[1:]:
                assert len(s.vm) == len(self.st.vm) and len(s.lg) == len(self.st.lg)
            self.out.append(f'{label}:')
    def new_kernel(self, name):
        self.st = State(); self.maxv = 0; self.maxs = 0; self.maxa = -1
        self.out.append(f'.globl {name}\n.p2align 8\n.type {name},@function\n{name}:')
    def barrier(self):
        self.ins('s_barrier')
    def text(self): return '\n'.join(self.out) + '\n'

class Alloc:
    def __init__(self, start=0, limit=256):
        self.used = [i < start for i in range(limit)]; self.limit = limit; self.sz = {}
    def get(self, n=1, align=None):
        al = align or (1 if n == 1 else 2 if n < 4 else 4)
        for b in range(0, self.limit - n + 1, al):
            if not any(self.used[b:b+n]):
                for i in range(b, b+n): self.used[i] = True
                self.sz[b] = n
                return b
        raise AssertionError('out of registers')
    def free(self, *bs):
        for b in bs:
            if isinstance(b, (list, tuple)): self.free(*b); continue
            for i in range(b, b + self.sz[b]): self.used[i] = False
    def snap(self): return (list(self.used), dict(self.sz))
    def restore(self, s): self.used = list(s[0]); self.sz = dict(s[1])

def vr(b, n=1): return f'v{b}' if n == 1 else f'v[{b}:{b+n-1}]'
def sr(b, n=1): return f's{b}' if n == 1 else f's[{b}:{b+n-1}]'
def ar(b, n=1): return f'a{b}' if n == 1 else f'a[{b}:{b+n-1}]'
```

```python
import sys, struct
from emit import *

NAME = 'recurrent_scan__linear_kernel_hedgehog__mixer_s_mlp__prompt'
HS_OFF, PQ_OFF, KVP_OFF, ST1_OFF, X1_OFF, ST2_OFF, O_OFF, H3_OFF = 0, 0x200000, 0x400000, 0x600000, 0x640000, 0x800000, 0x880000, 0xB00000
STAMP_OFF = 0x2000000
WS_SIZE = 0x3000000
LOG2E = 1.4426950408889634
def f2u(x): return struct.unpack('<I', struct.pack('<f', x))[0]
def fl(x): return hex(f2u(x))
GELU_C1 = -2.0 * 0.7978845608028654 * LOG2E
GELU_C3 = GELU_C1 * 0.044715

class Opt:
    stamps = False
    prefetch = True

def srd(A, b, size):
    A(f's_mov_b32 s{b+2}, {hex(size)}\n s_mov_b32 s{b+3}, 0x00020000')

def stamp_begin(A):
    if Opt.stamps: A('s_memrealtime s[90:91]')
def stamp_mid(A, i):
    if Opt.stamps: A(f's_memrealtime s[{90+2*i}:{91+2*i}]')
def stamp_end(A, kidx, ws_srd):
    if not Opt.stamps: return
    A('s_memrealtime s[96:97]')
    A(f's_lshl_b32 s98, s2, 6\n s_lshl_b32 s99, s3, 4\n s_add_u32 s98, s98, s99\n s_add_u32 s98, s98, {STAMP_OFF + kidx*0x10000}')
    A('v_mov_b32 v4, s90\n v_mov_b32 v5, s92\n v_mov_b32 v6, s94\n v_mov_b32 v7, s96\n v_mov_b32 v1, 0')
    A('s_mov_b64 exec, 1')
    A(f'buffer_store_dwordx4 v[4:7], v1, s[{ws_srd}:{ws_srd+3}], s98 offen')

def code_prefetch(A, label, endlabel, vtmp, vdst, s4, rounds=1):
    if not Opt.prefetch: return
    A(f's_getpc_b64 s[{s4}:{s4+1}]')
    lab = f'.Lpc{len(A.out)}'
    A.raw(f'{lab}:')
    if label is not None:
        A(f's_add_u32 s{s4}, s{s4}, {label}-{lab}')
        A(f's_addc_u32 s{s4+1}, s{s4+1}, 0')
    A(f's_mov_b32 s{s4+2}, {endlabel}-{label or lab}\n s_mov_b32 s{s4+3}, 0x00020000')
    A(f'v_lshlrev_b32 v{vtmp}, 6, v0')
    for r in range(rounds):
        if r: A(f'v_add_u32 v{vtmp}, 0x4000, v{vtmp}')
        A(f'buffer_load_dword v{vdst+r}, v{vtmp}, s[{s4}:{s4+3}], 0 offen', tag='pf')

def pk(op, d, a, b, c=None, sel=None, selhi=None, neg=None):
    n = 3 if c is not None else 2
    s = f'{op} v[{d}:{d+1}], v[{a}:{a+1}], v[{b}:{b+1}]' + (f', v[{c}:{c+1}]' if c is not None else '')
    if sel: s += ' op_sel:[' + ','.join(map(str, sel)) + ']'
    if selhi: s += ' op_sel_hi:[' + ','.join(map(str, selhi)) + ']'
    if neg: s += ' neg_lo:[' + ','.join(map(str, neg)) + '] neg_hi:[' + ','.join(map(str, neg)) + ']'
    return s

def xhalf(A, op, r, t):
    A(f'v_mov_b32 v{t}, v{r}')
    A(f'v_permlane32_swap_b32 v{r}, v{t}')
    A(f'{op} v{r}, v{r}, v{t}')

def softmax_pair(A, p, cb, e, outp, outn, tmp, scale=None):
    mx, mn, t0 = tmp, tmp + 1, tmp + 2
    A(f'v_max3_f32 v{mx}, v{p}, v{p+1}, v{p+2}')
    A(f'v_min3_f32 v{mn}, v{p}, v{p+1}, v{p+2}')
    for i in range(3, 13, 2):
        A(f'v_max3_f32 v{mx}, v{mx}, v{p+i}, v{p+i+1}')
        A(f'v_min3_f32 v{mn}, v{mn}, v{p+i}, v{p+i+1}')
    A(f'v_max_f32 v{mx}, v{mx}, v{p+13}')
    A(f'v_min_f32 v{mn}, v{mn}, v{p+13}')
    A(f'v_mov_b32 v{t0}, v{mx}\n v_mov_b32 v{t0+1}, v{mn}')
    A(f'v_permlane32_swap_b32 v{mx}, v{t0}\n v_permlane32_swap_b32 v{mn}, v{t0+1}')
    A(f'v_max_f32 v{mx}, v{mx}, v{t0}\n v_min_f32 v{mn}, v{mn}, v{t0+1}')
    for sign, ext, out in ((0, mx, outp), (1, mn, outn)):
        A(f'v_mul_f32 v{cb+1}, v{cb}, v{ext}')
        for i in range(0, 14, 2):
            A(pk('v_pk_fma_f32', e+i, p+i, cb, cb, sel=[0,0,1], selhi=[1,0,1], neg=[0,0,1] if sign == 0 else [1,0,0]))
        for i in range(14): A(f'v_exp_f32 v{e+i}, v{e+i}')
        A(pk('v_pk_add_f32', t0, e, e+2))
        for i in range(4, 14, 2): A(pk('v_pk_add_f32', t0, t0, e+i))
        A(f'v_add_f32 v{t0}, v{t0}, v{t0+1}')
        xhalf(A, 'v_add_f32', t0, t0+1)
        A(f'v_rcp_f32 v{t0}, v{t0}')
        if scale is not None: A(f'v_mul_f32 v{t0}, v{t0}, v{scale}')
        for i in range(0, 14, 2):
            A(pk('v_pk_mul_f32', e+i, e+i, t0, selhi=[1,0]))
        for i in range(7): A(f'v_cvt_pk_bf16_f32 v{out+i}, v{e+2*i}, v{e+2*i+1}')
        A(f'v_mov_b32 v{out+7}, 0')

def gelu_pack(A, a, n, kk, inv, t, out):
    for i in range(0, n, 2): A(pk('v_pk_mul_f32', t+i, a+i, a+i))
    for i in range(0, n, 2): A(pk('v_pk_fma_f32', t+i, t+i, kk, kk, sel=[0,1,0], selhi=[1,1,0]))
    for i in range(0, n, 2): A(pk('v_pk_mul_f32', t+i, t+i, a+i))
    for i in range(n): A(f'v_exp_f32 v{t+i}, v{t+i}')
    for i in range(0, n, 2): A(pk('v_pk_fma_f32', t+i, t+i, inv, inv, selhi=[1,0,0]))
    for i in range(n): A(f'v_rcp_f32 v{t+i}, v{t+i}')
    for i in range(0, n, 2): A(pk('v_pk_mul_f32', t+i, t+i, a+i))
    for i in range(0, n, 2): A(f'v_cvt_pk_bf16_f32 v{out+i//2}, v{t+i}, v{t+i+1}')

def _op4(x): return x if isinstance(x, str) else f'v[{x}:{x+3}]'
def mfma32(d, a, b, c=None):
    cs = f'v[{d}:{d+15}]' if c is None else c
    return f'v_mfma_f32_32x32x16_bf16 v[{d}:{d+15}], {_op4(a)}, {_op4(b)}, {cs}'
def mfma16(d, a, b, c=None):
    cs = f'v[{d}:{d+3}]' if c is None else c
    return f'v_mfma_f32_16x16x32_bf16 v[{d}:{d+3}], {_op4(a)}, {_op4(b)}, {cs}'

def lane_wave(A, vl, sw, vt):
    A(f'v_lshrrev_b32 v{vt}, 6, v0\n v_and_b32 v{vl}, 63, v0\n v_readfirstlane_b32 s{sw}, v{vt}')

def ones_mask_frag(A, d, vl, t):
    A(f'v_lshrrev_b32 v{t}, 2, v{vl}')
    A(f'v_lshrrev_b32 v{t+1}, 4, v{vl}')
    A(f'v_xor_b32 v{t}, v{t}, v{t+1}')
    A(f'v_and_b32 v{t}, 1, v{t}')
    A(f'v_and_b32 v{t+1}, 3, v{vl}')
    A(f'v_or_b32 v{t}, v{t}, v{t+1}')
    A(f'v_cmp_eq_u32 vcc, 0, v{t}')
    A(f'v_mov_b32 v{t+1}, 0x3f803f80')
    A(f'v_cndmask_b32 v{d}, 0, v{t+1}, vcc')
    A(f'v_mov_b32 v{d+1}, v{d}\n v_mov_b32 v{d+2}, v{d}\n v_mov_b32 v{d+3}, v{d}')

def w224_dma_off(A, d, vl, t, s_pitch, s_offA, s_offB):
    A(f'v_mul_u32_u24 v{t}, 4682, v{vl}')
    A(f'v_lshrrev_b32 v{t}, 16, v{t}')
    A(f'v_mul_u32_u24 v{t+1}, 14, v{t}')
    A(f'v_sub_u32 v{t+1}, v{vl}, v{t+1}')
    A(f'v_lshrrev_b32 v{t+2}, 1, v{t}')
    A(f'v_and_b32 v{t}, 1, v{t}')
    A(f'v_lshl_add_u32 v{t}, v{t}, 2, v{t+2}')
    A(f'v_mul_lo_u32 v{t}, v{t}, s{s_pitch}')
    A(f'v_lshl_add_u32 v{t}, v{t+1}, 4, v{t}')
    A(f'v_cmp_gt_u32 vcc, 7, v{t+1}')
    A(f'v_mov_b32 v{t+1}, s{s_offA}\n v_mov_b32 v{t+2}, s{s_offB}')
    A(f'v_cndmask_b32 v{t+1}, v{t+2}, v{t+1}, vcc')
    A(f'v_add_u32 v{d}, v{t}, v{t+1}')

EXEC56 = 's_mov_b32 exec_hi, 0x00ffffff'
EXEC64 = 's_mov_b32 exec_hi, -1'

def corr_xfrag(A, d, m, sig, t):
    A(f'v_cvt_pk_bf16_f32 v{d}, -v{m}, -v{m}')
    A(f'v_and_b32 v{t}, 0xffff0000, v{d}')
    A(f'v_sub_f32 v{t}, -v{m}, v{t}') if False else A(f'v_add_f32 v{t}, v{m}, v{t}')
    if sig is not None:
        A(f'v_cvt_pk_bf16_f32 v{d+1}, -v{t}, v{sig}')
        A(f'v_and_b32 v{t}, 0xffff0000, v{d+1}')
        A(f'v_sub_f32 v{t}, v{sig}, v{t}')
        A(f'v_cvt_pk_bf16_f32 v{d+2}, v{t}, 0')
    else:
        A(f'v_cvt_pk_bf16_f32 v{d+1}, -v{t}, 0')
        A(f'v_mov_b32 v{d+2}, 0')
    A(f'v_mov_b32 v{d+3}, 0')

def corr_wfrag(A, d, cs, t, lomask):
    A(f'v_cndmask_b32 v{t}, 0, v{cs}, {lomask}')
    A(f'v_cvt_pk_bf16_f32 v{d+1}, v{t}, 0')
    A(f'v_lshlrev_b32 v{d+2}, 16, v{d+1}')
    A(f'v_sub_f32 v{d+2}, v{t}, v{d+2}')
    A(f'v_cvt_pk_bf16_f32 v{d}, v{t}, v{d+2}')
    A(f'v_mov_b32 v{d+2}, 0\n v_mov_b32 v{d+3}, 0')

K1_XR, K1_WR, K1_EX = 0, 81920, 81920 + 5*14336
K1_LDS = K1_EX + 2048

def k1(A, name):
    A.new_kernel(name)
    stamp_begin(A)
    A('s_load_dwordx2 s[4:5], s[0:1], 0\n s_load_dwordx2 s[20:21], s[0:1], 8\n s_load_dwordx2 s[16:17], s[0:1], 16')
    A('s_load_dwordx2 s[22:23], s[0:1], 40\n s_load_dwordx2 s[12:13], s[0:1], 88')
    A('s_cmp_ge_u32 s2, 256')
    A.branch('s_cbranch_scc1', f'{name}_done')
    V = Alloc(1)
    vl = V.get(); t = V.get(8, 4); vpf = V.get(2)
    code_prefetch(A, None, f'{name}_end', t, vpf, 24, rounds=2)
    sW, sRG, sCG, sTP, sJ, sPitch, sOffA, sOffB, sCb0, sCb1, sC, sXb, sXc, sWc, sT, sP64, sWb, sMx, sMw, sT2 = 3, *range(30, 49)
    lane_wave(A, vl, sW, t)
    A(f's_and_b32 s{sRG}, s2, 7\n s_lshl_b32 s{sRG}, s{sRG}, 1\n s_bfe_u32 s{sT}, s2, 0x10003\n s_add_u32 s{sRG}, s{sRG}, s{sT}')
    A(f's_lshr_b32 s{sCG}, s2, 4')
    A(f's_and_b32 s{sTP}, s{sW}, 1\n s_lshr_b32 s{sJ}, s{sW}, 1')
    A(f's_and_b32 s{sT}, s{sCG}, 3\n s_mul_i32 s{sOffA}, s{sT}, 224\n s_mov_b32 s{sOffB}, s{sOffA}')
    A(f's_mul_i32 s{sT}, s{sCG}, 112\n s_add_u32 s{sT2}, s{sT}, 896\n s_add_u32 s{sT}, s{sT}, {1792-112}')
    A(f's_cmp_lt_u32 s{sCG}, 8\n s_cselect_b32 s{sOffA}, s{sT2}, s{sOffA}\n s_cselect_b32 s{sOffB}, s{sT}, s{sOffB}')
    A(f's_cselect_b32 s{sT}, 56, 112\n s_cselect_b32 s{sT2}, 112, 56')
    A(f's_cmp_ge_u32 s{sCG}, 12\n s_cselect_b32 s{sT}, 128, s{sT}\n s_cselect_b32 s{sT2}, 64, s{sT2}')
    A(f's_mov_b32 s{sPitch}, 2688\n s_cselect_b32 s{sPitch}, 896, s{sPitch}')
    A(f's_mov_b32 s10, {448*2688}\n s_cselect_b32 s10, {448*896}, s10\n s_mov_b32 s11, 0x00020000')
    A(f's_mul_i32 s{sCb0}, s{sJ}, s{sT}\n s_add_u32 s{sCb1}, s{sCb0}, s{sT2}')
    srd(A, 4, 2048*896); srd(A, 12, WS_SIZE); srd(A, 16, 16*28*28*2)
    A(f's_add_u32 s{sC}, s{sCG}, s{sRG}\n s_mul_i32 s{sT}, s{sC}, 37\n s_lshr_b32 s{sT}, s{sT}, 8\n s_mul_i32 s{sT}, s{sT}, 7\n s_sub_u32 s{sC}, s{sC}, s{sT}')
    A(f's_lshl_b32 s{sP64}, s{sPitch}, 6')
    A(f's_lshl_b32 s{sXb}, s{sRG}, 4\n s_add_u32 s{sXb}, s{sXb}, s{sW}\n s_mul_i32 s{sXb}, s{sXb}, {8*896}')
    A(f's_lshl_b32 s{sMx}, s{sW}, 10')
    A(f's_lshl_b32 s{sWb}, s{sW}, 4\n s_mul_i32 s{sWb}, s{sWb}, s{sPitch}\n s_mul_i32 s{sMw}, s{sW}, {4*896}\n s_add_u32 s{sMw}, s{sMw}, {K1_WR}')
    sP2, sP8, sP10 = 49, 50, 51
    A(f's_lshl_b32 s{sP2}, s{sPitch}, 1\n s_lshl_b32 s{sP8}, s{sPitch}, 3\n s_add_u32 s{sP10}, s{sP2}, s{sP8}')
    vXoff = V.get(); vWoff = V.get()
    A(f'v_lshrrev_b32 v{t}, 3, v{vl}\n v_mul_u32_u24 v{t}, 896, v{t}')
    A(f'v_lshrrev_b32 v{t+1}, 4, v{vl}\n s_lshl_b32 s{sT}, s{sTP}, 2\n v_or_b32 v{t+1}, s{sT}, v{t+1}')
    A(f'v_and_b32 v{t+2}, 7, v{vl}\n v_xor_b32 v{t+1}, v{t+1}, v{t+2}\n v_lshl_add_u32 v{vXoff}, v{t+1}, 4, v{t}')
    w224_dma_off(A, vWoff, vl, t, sPitch, sOffA, sOffB)
    A(f's_cmp_ge_u32 s{sCG}, 12')
    A('s_cselect_b32 s8, s22, s20\n s_cselect_b32 s9, s23, s21')

    def issue_chunk(ci):
        slot = ci % 5
        A(f's_lshl_b32 s{sXc}, s{sC}, 7\n s_add_u32 s{sXc}, s{sXc}, s{sXb}')
        A(f's_mul_i32 s{sWc}, s{sC}, s{sP64}\n s_add_u32 s{sWc}, s{sWc}, s{sWb}')
        for i in range(4):
            A(f's_add_u32 m0, s{sMx}, {K1_XR + slot*16384 + i*4096}')
            if i: A(f's_add_u32 s{sXc}, s{sXc}, {32*896}')
            A(f'buffer_load_dwordx4 v{vXoff}, s[4:7], s{sXc} offen lds', tag=('c', ci))
        A(EXEC56)
        for i in range(4):
            A(f's_add_u32 m0, s{sMw}, {slot*14336 + i*896}')
            if i == 0: so = sWc
            else:
                A(f's_add_u32 s{sT}, s{sWc}, s{[0, sP2, sP8, sP10][i]}'); so = sT
            A(f'buffer_load_dwordx4 v{vWoff}, s[8:11], s{so} offen lds', tag=('c', ci))
        A(EXEC64)
        A(f's_add_u32 s{sC}, s{sC}, 1\n s_cmp_eq_u32 s{sC}, 7\n s_cselect_b32 s{sC}, 0, s{sC}')
    for ci in range(5): issue_chunk(ci)

    vXa = [[V.get() for s in range(4)] for e in range(2)]
    vXb = [[V.get() for s in range(4)] for e in range(2)]
    vWa = [V.get() for e in range(2)]; vWb = [V.get() for e in range(2)]
    vT31 = V.get(); vH = V.get()
    A(f'v_and_b32 v{vT31}, 31, v{vl}\n v_lshrrev_b32 v{vH}, 5, v{vl}')
    A(f'v_bfe_u32 v{t}, v{vl}, 1, 3\n v_xor_b32 v{t}, v{t}, v{vH}')
    sTile0, sTile1 = 52, 53
    A(f's_lshl_b32 s{sTile0}, s{sTP}, 1\n s_add_u32 s{sTile0}, s{sTile0}, s{sJ}\n s_xor_b32 s{sTile1}, s{sTile0}, 1')
    A(f's_lshl_b32 s{sT}, s{sTile0}, 12\n v_lshlrev_b32 v{t+1}, 7, v{vT31}\n v_add_u32 v{t+1}, s{sT}, v{t+1}')
    for s in range(4):
        A(f'v_xor_b32 v{t+2}, {2*s}, v{t}\n v_lshl_add_u32 v{vXa[0][s]}, v{t+2}, 4, v{t+1}')
        A(f'v_xor_b32 v{vXa[1][s]}, 0x1000, v{vXa[0][s]}')
        A(f'v_add_u32 v{vXb[0][s]}, 0x10000, v{vXa[0][s]}\n v_add_u32 v{vXb[1][s]}, 0x10000, v{vXa[1][s]}')
    A(f'v_bfe_u32 v{t}, v{vl}, 2, 2\n v_lshl_add_u32 v{t}, v{vH}, 2, v{t}\n v_mul_u32_u24 v{t}, 448, v{t}\n v_add_u32 v{t}, {K1_WR}, v{t}')
    A(f'v_bfe_u32 v{t+1}, v{vl}, 4, 1\n v_lshlrev_b32 v{t+1}, 5, v{t+1}\n v_and_b32 v{t+2}, 3, v{vl}\n v_lshl_add_u32 v{t+1}, v{t+2}, 3, v{t+1}')
    A(f'v_add3_u32 v{vWa[0]}, s{sCb0}, v{t}, v{t+1}')
    A(f'v_add_u32 v{t+1}, s{sCb1}, v{t+1}\n v_min_u32 v{t+1}, 216, v{t+1}\n v_add_u32 v{vWa[1]}, v{t}, v{t+1}')
    A(f'v_add_u32 v{vWb[0]}, {4*14336}, v{vWa[0]}\n v_add_u32 v{vWb[1]}, {4*14336}, v{vWa[1]}')
    vOnes = V.get(4); ones_mask_frag(A, vOnes, vl, t)
    acc = [[V.get(16) for e in range(2)] for f in range(2)]
    cs = [V.get(4) for f in range(2)]
    fx = [[V.get(4) for e in range(2)] for b in range(2)]
    fw = [[V.get(4) for f in range(2)] for b in range(2)]
    vS = V.get(2); vQ = V.get(2)
    A(f'v_mov_b32 v{vS}, 0\n v_mov_b32 v{vS+1}, 0\n v_mov_b32 v{vQ}, 0\n v_mov_b32 v{vQ+1}, 0')
    wphi = [V.get(8, 4) for i in range(2)]
    vPo = V.get(); vPo2 = V.get()
    A(f'v_cmp_lt_u32 vcc, 27, v{vT31}\n v_subrev_u32 v{t}, 2, v{vT31}\n v_cndmask_b32 v{t}, v{vT31}, v{t}, vcc')
    A(f'v_mul_u32_u24 v{t+1}, 112, v{vH}\n v_add_lshl_u32 v{vPo}, v{t}, v{t+1}, 1')
    A(f'v_and_b32 v{t}, 26, v{vT31}\n v_cmp_eq_u32 vcc, 26, v{t}\n v_mov_b32 v{t+1}, 0x7fff0000\n v_cndmask_b32 v{vPo}, v{vPo}, v{t+1}, vcc')
    A(f'v_cmp_eq_u32 vcc, 1, v{vH}\n v_cndmask_b32 v{vPo2}, v{vPo}, v{t+1}, vcc')
    wraw = [V.get(16) for i in range(2)]
    def load_wphi(idx, shead):
        for i in range(2):
            for j in range(8):
                d0 = (j & 3) + 8*(2*i + (j >> 2))
                off = vPo2 if d0 >= 24 else vPo
                A(f'buffer_load_ushort v{wraw[idx] + 8*i + j}, v{off}, s[16:19], s{shead} offen offset:{d0*56}', tag='wphi')
    def pack_wphi(idx):
        for i in range(8): A(f'v_lshl_or_b32 v{wphi[idx]+i}, v{wraw[idx]+2*i+1}, 16, v{wraw[idx]+2*i}')

    def reads(n):
        ci, s = divmod(n, 4); slot = ci % 5; b = n & 1
        for e in range(2):
            if slot < 4: A(f'ds_read_b128 v[{fx[b][e]}:{fx[b][e]+3}], v{vXa[e][s]} offset:{slot*16384}')
            else: A(f'ds_read_b128 v[{fx[b][e]}:{fx[b][e]+3}], v{vXb[e][s]}')
        for f in range(2):
            for sec in range(2):
                base, o = (vWa[f], slot*14336) if slot < 4 else (vWb[f], 0)
                A(f'ds_read_b64_tr_b16 v[{fw[b][f]+2*sec}:{fw[b][f]+2*sec+1}], v{base} offset:{o + s*3584 + sec*224}')
    def stats(n, part):
        x = fx[n & 1][0] + part
        A(f'v_lshlrev_b32 v{t}, 16, v{x}\n v_and_b32 v{t+1}, 0xffff0000, v{x}')
        A(f'v_add_f32 v{vS}, v{vS}, v{t}\n v_add_f32 v{vS+1}, v{vS+1}, v{t+1}')
        A(f'v_fmac_f32 v{vQ}, v{t}, v{t}\n v_fmac_f32 v{vQ+1}, v{t+1}, v{t+1}')
    def mainloop(kv, midhook):
        A.wait_tag(('c', 0)); A.barrier(); reads(0)
        for n in range(28):
            b = n & 1; z = '0' if n == 0 else None
            if n + 1 < 28:
                if (n + 1) % 4 == 0:
                    ci = (n + 1) // 4
                    A.wait(lg=0); A.wait_tag(('c', ci)); A.barrier()
                    reads(n + 1)
                    if ci + 4 <= 6: issue_chunk(ci + 4)
                    if ci == 3: midhook()
                else:
                    reads(n + 1)
            k = 0
            for f in range(2):
                for e in range(2):
                    if kv and f == 1: A(mfma32(acc[f][e], fx[b][e], fw[b][f], z))
                    else: A(mfma32(acc[f][e], fw[b][f], fx[b][e], z))
                    stats(n, k); k += 1
                A(mfma16(cs[f], vOnes, fw[b][f], z))
    st_m = [V.get() for e in range(2)]; st_var = [V.get() for e in range(2)]; st_r = [V.get() for e in range(2)]; st_sig = [V.get() for e in range(2)]
    cx = [V.get(4) for e in range(2)]; cw = [V.get(4) for f in range(2)]
    ex = V.get(8, 4)
    def finish_stats():
        A(f'v_add_f32 v{vS}, v{vS}, v{vS+1}\n v_add_f32 v{vS+1}, v{vQ}, v{vQ+1}')
        A(f's_lshl_b32 s{sT}, s{sTile0}, 9\n s_add_u32 s{sT}, s{sT}, {K1_EX}')
        A(f'v_lshl_add_u32 v{t}, v{vl}, 3, s{sT}')
        A(f'ds_write_b64 v{t}, v[{vS}:{vS+1}]')
        A(f'v_lshl_add_u32 v{t}, v{vT31}, 3, s{sT}\n v_xor_b32 v{t+1}, 0x200, v{t}')
        A.wait(lg=0); A.barrier()
        for e in range(2):
            A(f'ds_read_b64 v[{ex+4*e}:{ex+4*e+1}], v{t+e}\n ds_read_b64 v[{ex+4*e+2}:{ex+4*e+3}], v{t+e} offset:256')
        A(f's_mov_b32 s{sT}, {fl(1.0/448)}')
        for e in range(2):
            x = ex + 4*e
            A(f'v_add_f32 v{x}, v{x}, v{x+2}\n v_add_f32 v{x+1}, v{x+1}, v{x+3}')
            A(f'v_mul_f32 v{st_m[e]}, s{sT}, v{x}\n v_mul_f32 v{x+1}, s{sT}, v{x+1}')
            A(f'v_fma_f32 v{x+1}, -v{st_m[e]}, v{st_m[e]}, v{x+1}\n v_max_f32 v{st_var[e]}, 0, v{x+1}')
            A(f'v_add_f32 v{x}, {fl(1e-5)}, v{st_var[e]}\n v_rsq_f32 v{st_r[e]}, v{x}\n v_mul_f32 v{st_sig[e]}, v{x}, v{st_r[e]}')
    assert K1_EX % 1024 == 0
    sLo = 54
    A('s_mov_b32 s54, -1\n s_mov_b32 s55, 0\n s_mov_b32 s56, 0x0fffffff\n s_mov_b32 s57, 0')
    sH0, sH1 = 58, 59
    V.free(vXa, vXb, vWa, vWb, vOnes, fx, fw, vPo, vPo2, vXoff, vWoff)
    vtop = V.snap()

    A(f's_cmp_ge_u32 s{sCG}, 8')
    A.branch('s_cbranch_scc1', f'{name}_qw')
    A(f's_lshl_b32 s{sH0}, s{sCG}, 1\n s_add_u32 s{sH0}, s{sH0}, s{sJ}\n s_mul_i32 s{sH1}, s{sH0}, 1568')
    mainloop(True, lambda: load_wphi(0, sH1))
    stamp_mid(A, 1)
    finish_stats()
    V.restore(vtop)
    idf = V.get(8, 4)
    A(f'v_bfe_u32 v{t}, v{vl}, 2, 1\n v_cmp_eq_u32 vcc, v{t}, v{vH}')
    A(f'v_and_b32 v{t}, 1, v{vl}\n v_lshlrev_b32 v{t}, 4, v{t}\n v_mov_b32 v{t+1}, 0x3f80\n v_lshlrev_b32 v{t+1}, v{t}, v{t+1}')
    A(f'v_cndmask_b32 v{t+1}, 0, v{t+1}, vcc')
    A(f'v_bfe_u32 v{t}, v{vl}, 1, 1\n v_bfe_u32 v{t+2}, v{vl}, 3, 2\n v_lshl_add_u32 v{t}, v{t+2}, 1, v{t}')
    for d in range(8):
        A(f'v_cmp_eq_u32 vcc, {d}, v{t}\n v_cndmask_b32 v{idf+d}, 0, v{t+1}, vcc')
    for e in range(2): corr_xfrag(A, cx[e], st_m[e], st_sig[e], t)
    corr_wfrag(A, cw[0], cs[0], t, 's[54:55]')
    corr_wfrag(A, cw[1], cs[1], t, 's[56:57]')
    A('s_mov_b32 exec_lo, 0x10000000\n s_mov_b32 exec_hi, 0')
    A(f'v_mov_b32 v{cw[1]+1}, 0x3f800000\n v_mov_b32 v{cw[1]+2}, 0x3f80')
    A('s_mov_b32 exec_lo, 0xf0000000\n s_mov_b32 exec_hi, 0xf0000000')
    for e in range(2):
        for r in range(16): A(f'v_mov_b32 v{acc[1][e]+r}, 0')
    A('s_mov_b64 exec, -1')
    for e in range(2):
        A(mfma32(acc[0][e], cw[0], cx[e]))
    for e in range(2):
        A(mfma32(acc[1][e], cx[e], cw[1]))
    pack_wphi(0); V.free(wraw, wphi[1], ex, vS, vQ)
    kb = [V.get(8, 4) for e in range(2)]; vb = [V.get(8, 4) for e in range(2)]
    pkk = [V.get(16) for e in range(2)]
    for e in range(2):
        for i in range(8): A(f'v_cvt_pk_bf16_f32 v{kb[e]+i}, v{acc[0][e]+2*i}, v{acc[0][e]+2*i+1}')
        A(mfma32(pkk[e], wphi[0], kb[e], '0')); A(mfma32(pkk[e], wphi[0]+4, kb[e]+4))
    for e in range(2):
        for i in range(8): A(f'v_cvt_pk_bf16_f32 v{vb[e]+i}, v{acc[1][e]+2*i}, v{acc[1][e]+2*i+1}')
    cb = V.get(2); ebuf = V.get(14, 2); tmp = V.get(4)
    ph = [kb[0], kb[1]]
    tr = [acc[0][0], acc[0][1]]
    kvacc = [acc[1][0], acc[1][1]]
    tb = V.get(8, 4)
    for e in range(2):
        A(f'v_mul_f32 v{cb}, {fl(LOG2E)}, v{st_r[e]}')
        softmax_pair(A, pkk[e], cb, ebuf, ph[0], ph[1], tmp, scale=st_r[e])
        for sg in range(2):
            A(mfma32(tr[sg], ph[sg], idf, '0')); A(mfma32(tr[sg], ph[sg]+4, idf+4))
        for sg in range(2):
            for i in range(8): A(f'v_cvt_pk_bf16_f32 v{tb+i}, v{tr[sg]+2*i}, v{tr[sg]+2*i+1}')
            A(mfma32(kvacc[sg], tb, vb[e], '0' if e == 0 else None)); A(mfma32(kvacc[sg], tb+4, vb[e]+4))
    A(f's_lshl_b32 s{sT}, s{sH0}, 5\n s_lshl_b32 s{sT2}, s{sRG}, 1\n s_add_u32 s{sT}, s{sT}, s{sT2}\n s_add_u32 s{sT}, s{sT}, s{sTP}')
    A(f's_lshl_b32 s{sT}, s{sT}, 12\n s_add_u32 s{sT}, s{sT}, {KVP_OFF}')
    A(f'v_lshlrev_b32 v{t}, 4, v{vl}')
    for sg in range(2):
        o = ph[sg]
        for i in range(8): A(f'v_cvt_pk_bf16_f32 v{o+i}, v{kvacc[sg]+2*i}, v{kvacc[sg]+2*i+1}')
        for i in range(2): A(f'buffer_store_dwordx4 v[{o+4*i}:{o+4*i+3}], v{t}, s[12:15], s{sT} offen offset:{(2*sg+i)*1024}')
    stamp_end(A, 0, 12)
    A('s_endpgm')

    A.label(f'{name}_qw', False)
    A(f's_and_b32 s{sH0}, s{sCG}, 3\n s_lshl_b32 s{sH0}, s{sH0}, 2\n s_lshl_b32 s{sT}, s{sJ}, 1\n s_add_u32 s{sH0}, s{sH0}, s{sT}')
    A(f's_mul_i32 s{sH1}, s{sH0}, 1568\n s_add_u32 s60, s{sH1}, 1568')
    def hook():
        load_wphi(0, sH1); load_wphi(1, 60)
    mainloop(False, hook)
    stamp_mid(A, 1)
    finish_stats()
    V.restore(vtop)
    for e in range(2): corr_xfrag(A, cx[e], st_m[e], None, t)
    for f in range(2): corr_wfrag(A, cw[f], cs[f], t, 's[54:55]')
    for f in range(2):
        for e in range(2): A(mfma32(acc[f][e], cw[f], cx[e]))
    A(f's_cmp_ge_u32 s{sCG}, 12')
    A.branch('s_cbranch_scc1', f'{name}_w1')
    qb = [V.get(8, 4) for i in range(2)]; pq = [V.get(16) for i in range(2)]; rr = V.get(2)
    vSt = V.get(2); vo = V.get()
    pack_wphi(0); pack_wphi(1)
    A(f'v_lshlrev_b32 v{vo}, 4, v{vl}')
    A(f's_lshl_b32 s{sT}, s{sRG}, 2\n s_add_u32 s{sT}, s{sT}, s{sTile0}\n s_lshl_b32 s{sT}, s{sT}, 8\n s_add_u32 s{sT}, s{sT}, {ST1_OFF}')
    A(f'v_mov_b32 v{vSt}, v{st_m[0]}\n v_mov_b32 v{vSt+1}, v{st_r[0]}\n v_lshlrev_b32 v{t}, 3, v{vT31}')
    A(f'buffer_store_dwordx2 v[{vSt}:{vSt+1}], v{t}, s[12:15], s{sT} offen')
    u = 0
    for f in range(2):
        for e in range(2):
            q = qb[u & 1]; p = pq[u & 1]; u += 1
            for i in range(8): A(f'v_cvt_pk_bf16_f32 v{q+i}, v{acc[f][e]+2*i}, v{acc[f][e]+2*i+1}')
            A(mfma32(p, wphi[f], q, '0')); A(mfma32(p, wphi[f]+4, q+4))
            A(f's_add_u32 s{sT}, s{sH0}, {f}\n s_lshl_b32 s{sT}, s{sT}, 6\n s_lshl_b32 s{sT2}, s{sRG}, 2\n s_add_u32 s{sT}, s{sT}, s{sT2}')
            A(f's_add_u32 s{sT}, s{sT}, s{[sTile0, sTile1][e]}\n s_lshl_b32 s{sT}, s{sT}, 11\n s_add_u32 s{sT}, s{sT}, {PQ_OFF}')
            A(f'v_mov_b32 v{rr}, v{st_r[e]}')
            for i in range(0, 16, 2): A(pk('v_pk_mul_f32', p+i, p+i, rr, selhi=[1,0]))
            o = acc[f][e]
            for i in range(8): A(f'v_cvt_pk_bf16_f32 v{o+i}, v{p+2*i}, v{p+2*i+1}')
            for i in range(2): A(f'buffer_store_dwordx4 v[{o+4*i}:{o+4*i+3}], v{vo}, s[12:15], s{sT} offen offset:{i*1024}')
    stamp_end(A, 0, 12)
    A('s_endpgm')
    A.label(f'{name}_w1', False)
    V.restore(vtop)
    kk = [V.get(2) for e in range(2)]; inv = [V.get(2) for e in range(2)]; tt = V.get(16); ob = [V.get(8, 4) for i in range(2)]
    vo = [V.get() for e in range(2)]
    sD = 61
    A(f's_and_b32 s{sT}, s{sCG}, 3\n s_lshr_b32 s{sD}, s{sT}, 1\n s_add_u32 s{sD}, s{sD}, 1\n s_sub_u32 s{sT2}, 0, s{sD}')
    A(f's_bitcmp1_b32 s{sT}, 0\n s_cselect_b32 s{sD}, s{sT2}, s{sD}')
    A(f's_mul_i32 s{sH1}, s{sT}, 7\n s_lshl_b32 s{sT}, s{sJ}, 2\n s_add_u32 s{sH1}, s{sH1}, s{sT}\n s_lshl_b32 s{sH1}, s{sH1}, 10')
    if HS_OFF: A(f's_add_u32 s{sH1}, s{sH1}, {HS_OFF}')
    for e in range(2):
        A(f'v_mul_f32 v{t}, v{st_r[e]}, v{st_r[e]}\n v_mov_b32 v{t+1}, {fl(1e-5)}\n v_fma_f32 v{t}, v{t}, v{st_var[e]}, v{t+1}')
        A(f'v_rsq_f32 v{t}, v{t}\n v_mul_f32 v{t}, v{t}, v{st_r[e]}')
        A(f'v_rcp_f32 v{inv[e]}, v{t}\n v_mul_f32 v{kk[e]}, {fl(GELU_C1)}, v{t}\n v_mul_f32 v{t+1}, v{t}, v{t}')
        A(f'v_mul_f32 v{t+1}, {fl(0.044715)}, v{t+1}\n v_mul_f32 v{kk[e]+1}, v{t+1}, v{kk[e]}')
        A(f's_lshl_b32 s{sT}, s{sRG}, 2\n s_add_u32 s{sT}, s{sT}, s{[sTile0, sTile1][e]}\n s_lshl_b32 s{sT}, s{sT}, 5\n s_add_u32 s{sT}, s{sT}, s{sD}')
        A(f'v_add_u32 v{t}, s{sT}, v{vT31}')
        A(f'v_cmp_lt_u32 vcc, 2047, v{t}')
        A(f'v_and_b32 v{t}, 2047, v{t}\n v_lshrrev_b32 v{t+1}, 5, v{t}\n v_mul_u32_u24 v{t+1}, {28*1024}, v{t+1}')
        A(f'v_and_b32 v{t}, 31, v{t}\n v_lshl_add_u32 v{t}, v{vH}, 5, v{t}\n v_lshl_add_u32 v{vo[e]}, v{t}, 4, v{t+1}')
        lab = f'{name}_nz{e}'
        A.branch('s_cbranch_vccz', lab)
        A('s_mov_b64 exec, vcc')
        for f in range(2):
            for r in range(16): A(f'v_mov_b32 v{acc[f][e]+r}, 0')
        A('s_mov_b64 exec, -1')
        A.label(lab, True)
    u = 0
    for f, half in ((0, 0), (0, 1), (1, 0), (1, 1)):
        if (f, half) == (1, 1):
            A(f's_cmp_eq_u32 s{sJ}, 1')
            A.branch('s_cbranch_scc1', f'{name}_w1end')
        for e in range(2):
            o = ob[u & 1] ; u += 1
            gelu_pack(A, acc[f][e] + 8*half, 8, kk[e], inv[e], tt + 8*e, o)
            A(f'buffer_store_dwordx4 v[{o}:{o+3}], v{vo[e]}, s[12:15], s{sH1} offen offset:{(2*f+half)*1024}')
    A.st.vm = []; A.saved[f'{name}_w1end'][0].vm = []
    A.label(f'{name}_w1end', True)
    stamp_end(A, 0, 12)
    A.raw(f'{name}_done:')
    A('s_endpgm')
    A.raw(f'{name}_end:')
    return dict(name=name, grid=256, lds=K1_LDS, vgpr=A.maxv+1, sgpr=A.maxs+1)

def w128_dma_off(A, d, vl, t, s_col):
    A(f'v_lshrrev_b32 v{t}, 3, v{vl}\n v_mul_u32_u24 v{t}, 896, v{t}')
    A(f'v_bfe_u32 v{t+1}, v{vl}, 4, 1\n v_lshlrev_b32 v{t+1}, 2, v{t+1}\n v_and_b32 v{t+2}, 7, v{vl}\n v_xor_b32 v{t+1}, v{t+1}, v{t+2}')
    A(f'v_lshl_add_u32 v{t}, v{t+1}, 4, v{t}\n v_add_u32 v{d}, s{s_col}, v{t}')

def w128_read_addr(A, d, vl, t):
    A(f'v_bfe_u32 v{t}, v{vl}, 2, 2\n v_lshrrev_b32 v{t+1}, 5, v{vl}\n v_lshl_add_u32 v{t}, v{t+1}, 2, v{t}\n v_lshlrev_b32 v{t}, 7, v{t}')
    A(f'v_bfe_u32 v{t+1}, v{vl}, 3, 1\n v_lshl_add_u32 v{t}, v{t+1}, 6, v{t}')
    A(f'v_bfe_u32 v{t+1}, v{vl}, 4, 1\n v_lshl_add_u32 v{t}, v{t+1}, 5, v{t}')
    A(f'v_and_b32 v{t+1}, 3, v{vl}\n v_lshl_add_u32 v{d}, v{t+1}, 3, v{t}')

def unpack_x_tile(A, raw, dst):
    for j in range(2):
        A(f'v_permlane32_swap_b32 v{raw+4*j}, v{raw+4*j+2}\n v_permlane32_swap_b32 v{raw+4*j+1}, v{raw+4*j+3}')
    unpack16(A, raw, dst)
def unpack16(A, raw, dst, n=8):
    for i in range(n):
        A(f'v_lshlrev_b32 v{dst+2*i}, 16, v{raw+i}\n v_and_b32 v{dst+2*i+1}, 0xffff0000, v{raw+i}')

K2_LDS = 98304
def k2(A, name):
    A.new_kernel(name)
    stamp_begin(A)
    A('s_load_dwordx2 s[4:5], s[0:1], 0\n s_load_dwordx2 s[8:9], s[0:1], 48\n s_load_dwordx2 s[12:13], s[0:1], 88')
    A('s_cmp_ge_u32 s2, 240')
    A.branch('s_cbranch_scc1', f'{name}_done')
    V = Alloc(1)
    vl = V.get(); t = V.get(8, 4); vpf = V.get(2)
    code_prefetch(A, None, f'{name}_end', t, vpf, 24)
    sW, sX, sLoc, sT, sT2, sRG, sCG, sA, sB, sTile = 3, *range(30, 39)
    lane_wave(A, vl, sW, t)
    srd(A, 4, 2048*896); srd(A, 8, 448*896); srd(A, 12, WS_SIZE)
    A(f's_and_b32 s{sX}, s2, 7\n s_lshr_b32 s{sLoc}, s2, 3')
    vL16 = V.get(); vT31 = V.get(); vH = V.get()
    A(f'v_lshlrev_b32 v{vL16}, 4, v{vl}\n v_and_b32 v{vT31}, 31, v{vl}\n v_lshrrev_b32 v{vH}, 5, v{vl}')
    vtop = V.snap()
    A(f's_cmp_ge_u32 s{sLoc}, 14')
    A.branch('s_cbranch_scc1', f'{name}_a')
    A(f's_and_b32 s{sT}, s{sLoc}, 1\n s_lshl_b32 s{sRG}, s{sX}, 1\n s_add_u32 s{sRG}, s{sRG}, s{sT}\n s_lshr_b32 s{sCG}, s{sLoc}, 1')
    A(f's_lshl_b32 s{sTile}, s{sRG}, 2\n s_add_u32 s{sTile}, s{sTile}, s{sW}')
    A(f's_lshl_b32 s{sT}, s{sCG}, 7')
    vWoff = V.get(); w128_dma_off(A, vWoff, vl, t, sT)
    A(f's_mul_i32 s{sA}, s{sTile}, {28*1024}')
    if HS_OFF: A(f's_add_u32 s{sA}, s{sA}, {HS_OFF}')
    A(f's_mul_i32 s{sB}, s{sW}, {16*896}\n s_lshl_b32 s{sT2}, s{sW}, 11')
    fa = V.get(112)
    for c in range(7):
        for i in range(2):
            A(f's_add_u32 m0, s{sT2}, {c*8192 + i*1024}')
            A(f's_add_u32 s{sT}, s{sB}, {(c*64 + i*8)*896}')
            A(f'buffer_load_dwordx4 v{vWoff}, s[8:11], s{sT} offen lds', tag=('c', c))
        for s in range(4):
            A(f'buffer_load_dwordx4 v[{fa+16*c+4*s}:{fa+16*c+4*s+3}], v{vL16}, s[12:15], s{sA} offen offset:{s*1024}')
        if c < 6: A(f's_add_u32 s{sA}, s{sA}, 4096')
    xr = V.get(16); st = V.get(2)
    A(f'v_mul_u32_u24 v{t}, 896, v{vT31}\n v_lshl_add_u32 v{t}, v{vH}, 4, v{t}')
    A(f's_mul_i32 s{sT}, s{sTile}, {32*896}\n s_lshl_b32 s{sA}, s{sCG}, 7\n s_add_u32 s{sT}, s{sT}, s{sA}')
    for i in range(4): A(f'buffer_load_dwordx4 v[{xr+4*i}:{xr+4*i+3}], v{t}, s[4:7], s{sT} offen offset:{32*i}')
    A(f's_lshl_b32 s{sT}, s{sTile}, 8\n s_add_u32 s{sT}, s{sT}, {ST1_OFF}\n v_lshlrev_b32 v{t+1}, 3, v{vT31}')
    A(f'buffer_load_dwordx2 v[{st}:{st+1}], v{t+1}, s[12:15], s{sT} offen')
    vWa = [V.get(), V.get()]
    w128_read_addr(A, vWa[0], vl, t+2); A(f'v_xor_b32 v{vWa[1]}, 64, v{vWa[0]}')
    acc = [V.get(16) for f in range(2)]
    fw = [[V.get(4) for f in range(2)] for b in range(2)]
    def reads(n):
        for f in range(2):
            for sec in range(2):
                A(f'ds_read_b64_tr_b16 v[{fw[n&1][f]+2*sec}:{fw[n&1][f]+2*sec+1}], v{vWa[f]} offset:{n*2048 + sec*1024}')
    A.wait_tag(('c', 0)); A.barrier(); reads(0)
    for n in range(28):
        if n + 1 < 28:
            if (n + 1) % 4 == 0:
                A.wait_tag(('c', (n+1)//4)); A.barrier()
            reads(n + 1)
        for f in range(2): A(mfma32(acc[f], fw[n&1][f], fa + 4*n, '0' if n == 0 else None))
    stamp_mid(A, 1)
    xf = fa; ob = fa + 32; sq = fa + 48
    for f in range(2): unpack_x_tile(A, xr + 8*f, xf + 16*f)
    A(f'v_mul_f32 v{st}, v{st}, v{st+1}')
    for i in range(0, 32, 2):
        A(pk('v_pk_fma_f32', xf+i, xf+i, st, st, sel=[0,1,0], selhi=[1,1,0], neg=[0,0,1]))
    A(f's_mul_i32 s{sT}, s{sTile}, {28*1024}\n s_lshl_b32 s{sA}, s{sCG}, 12\n s_add_u32 s{sT}, s{sT}, s{sA}\n s_add_u32 s{sT}, s{sT}, {X1_OFF}')
    for f in range(2):
        for i in range(0, 16, 2): A(pk('v_pk_add_f32', xf+16*f+i, xf+16*f+i, acc[f]+i))
        for i in range(8): A(f'v_cvt_pk_bf16_f32 v{ob+8*f+i}, v{xf+16*f+2*i}, v{xf+16*f+2*i+1}')
        for i in range(2): A(f'buffer_store_dwordx4 v[{ob+8*f+4*i}:{ob+8*f+4*i+3}], v{vL16}, s[12:15], s{sT} offen offset:{(2*f+i)*1024}')
    A(pk('v_pk_add_f32', sq, xf, xf+2)); A(pk('v_pk_mul_f32', sq+2, xf, xf)); A(pk('v_pk_fma_f32', sq+2, xf+2, xf+2, sq+2))
    for i in range(4, 32, 2):
        A(pk('v_pk_add_f32', sq, sq, xf+i)); A(pk('v_pk_fma_f32', sq+2, xf+i, xf+i, sq+2))
    A(f'v_add_f32 v{sq}, v{sq}, v{sq+1}\n v_add_f32 v{sq+1}, v{sq+2}, v{sq+3}')
    A(f's_mul_i32 s{sT}, s{sTile}, 7\n s_add_u32 s{sT}, s{sT}, s{sCG}\n s_lshl_b32 s{sT}, s{sT}, 9\n s_add_u32 s{sT}, s{sT}, {ST2_OFF}')
    A(f'v_lshlrev_b32 v{t}, 3, v{vl}')
    A(f'buffer_store_dwordx2 v[{sq}:{sq+1}], v{t}, s[12:15], s{sT} offen')
    stamp_end(A, 1, 12)
    A('s_endpgm')
    A.label(f'{name}_a', False)
    V.restore(vtop)
    sHd, sTG = sRG, sCG
    A(f's_sub_u32 s{sLoc}, s{sLoc}, 14\n s_and_b32 s{sT}, s{sLoc}, 1\n s_lshl_b32 s{sHd}, s{sX}, 1\n s_add_u32 s{sHd}, s{sHd}, s{sT}\n s_lshr_b32 s{sTG}, s{sLoc}, 1')
    A(f's_lshl_b32 s{sTile}, s{sTG}, 3\n s_lshl_b32 s{sT}, s{sW}, 1\n s_add_u32 s{sTile}, s{sTile}, s{sT}')
    pqr = V.get(16)
    A(f's_lshl_b32 s{sT}, s{sHd}, 6\n s_add_u32 s{sT}, s{sT}, s{sTile}\n s_lshl_b32 s{sT}, s{sT}, 11\n s_add_u32 s{sT}, s{sT}, {PQ_OFF}')
    for i in range(4): A(f'buffer_load_dwordx4 v[{pqr+4*i}:{pqr+4*i+3}], v{vL16}, s[12:15], s{sT} offen offset:{i*1024}')
    kp = V.get(128)
    A(f's_lshl_b32 s{sA}, s{sHd}, 17\n s_lshl_b32 s{sT}, s{sW}, 10\n s_add_u32 s{sA}, s{sA}, s{sT}\n s_add_u32 s{sA}, s{sA}, {KVP_OFF}')
    for p in range(32):
        A(f'buffer_load_dwordx4 v[{kp+4*p}:{kp+4*p+3}], v{vL16}, s[12:15], s{sA} offen')
        if p < 31: A(f's_add_u32 s{sA}, s{sA}, 4096')
    pf = V.get(16); cb = V.get(2); ebuf = V.get(14, 2); tmp = V.get(4)
    ph = [[V.get(8, 4) for sg in range(2)] for e in range(2)]
    for e in range(2):
        unpack16(A, pqr + 8*e, pf, 7)
        A(f'v_mov_b32 v{cb}, {fl(LOG2E)}')
        softmax_pair(A, pf, cb, ebuf, ph[e][0], ph[e][1], tmp)
    ka = pf
    A(f's_mov_b32 s{sA}, 0x3f80\n s_mov_b32 s{sB}, 0x3f800000')
    for p in range(32):
        for i in range(4):
            c0 = '0' if p == 0 else f'v{ka+2*i}'; c1 = '0' if p == 0 else f'v{ka+2*i+1}'
            A(f'v_dot2_f32_bf16 v{ka+2*i}, v{kp+4*p+i}, s{sA}, {c0}\n v_dot2_f32_bf16 v{ka+2*i+1}, v{kp+4*p+i}, s{sB}, {c1}')
    stamp_mid(A, 1)
    for i in range(4): A(f'v_cvt_pk_bf16_f32 v{ka+8+i}, v{ka+2*i}, v{ka+2*i+1}')
    A(f'v_lshlrev_b32 v{t}, 4, v0')
    A(f'ds_write_b128 v{t}, v[{ka+8}:{ka+11}]')
    A.wait(lg=0); A.barrier()
    kf = kp
    for i in range(4): A(f'ds_read_b128 v[{kf+4*i}:{kf+4*i+3}], v{vL16} offset:{i*1024}')
    num = [kp + 16, kp + 32]
    for e in range(2):
        for i in range(4): A(mfma32(num[e], kf + 4*i, ph[e][i >> 1] + 4*(i & 1), '0' if i == 0 else None))
    A('s_mov_b32 s40, -1\n s_mov_b32 s41, 0')
    A(f's_lshl_b32 s{sT}, s{sTile}, 4\n s_add_u32 s{sT}, s{sT}, s{sHd}\n s_lshl_b32 s{sT}, s{sT}, 11\n s_add_u32 s{sT}, s{sT}, {O_OFF}')
    for e in range(2):
        n = num[e]; o = kp + 48 + 8*e
        A(f'v_mov_b32 v{cb}, v{n+12}\n v_mov_b32 v{cb+1}, v{n+12}')
        A(f'v_permlane32_swap_b32 v{cb+1}, v{cb}')
        A(f'v_add_f32 v{cb}, {fl(1e-6)}, v{cb}\n v_rcp_f32 v{cb}, v{cb}')
        for i in range(0, 16, 2): A(pk('v_pk_mul_f32', n+i, n+i, cb, selhi=[1,0]))
        for i in range(8): A(f'v_cvt_pk_bf16_f32 v{o+i}, v{n+2*i}, v{n+2*i+1}')
        A(f'v_cndmask_b32 v{o+6}, 0, v{o+6}, s[40:41]\n v_cndmask_b32 v{o+7}, 0, v{o+7}, s[40:41]')
        if e: A(f's_add_u32 s{sT}, s{sT}, {32*1024}')
        for i in range(2): A(f'buffer_store_dwordx4 v[{o+4*i}:{o+4*i+3}], v{vL16}, s[12:15], s{sT} offen offset:{i*1024}')
    stamp_end(A, 1, 12)
    A.raw(f'{name}_done:')
    A('s_endpgm')
    A.raw(f'{name}_end:')
    return dict(name=name, grid=240, lds=K2_LDS, vgpr=A.maxv+1, sgpr=A.maxs+1)

K3_LDS = 448*224
def k3(A, name):
    A.new_kernel(name)
    stamp_begin(A)
    A('s_load_dwordx2 s[8:9], s[0:1], 56\n s_load_dwordx2 s[12:13], s[0:1], 88')
    A('s_cmp_ge_u32 s2, 256')
    A.branch('s_cbranch_scc1', f'{name}_done')
    V = Alloc(1)
    vl = V.get(); t = V.get(8, 4); vpf = V.get(2)
    code_prefetch(A, None, f'{name}_end', t, vpf, 24)
    sW, sT, sT2, sRG, sCG, sA, sB, sTile, sPitch, sOff, sM = 3, *range(30, 40)
    lane_wave(A, vl, sW, t)
    srd(A, 8, 448*3584); srd(A, 12, WS_SIZE)
    A(f's_and_b32 s{sRG}, s2, 7\n s_lshl_b32 s{sRG}, s{sRG}, 1\n s_bfe_u32 s{sT}, s2, 0x10003\n s_add_u32 s{sRG}, s{sRG}, s{sT}\n s_lshr_b32 s{sCG}, s2, 4')
    A(f's_lshl_b32 s{sTile}, s{sRG}, 2\n s_add_u32 s{sTile}, s{sTile}, s{sW}')
    A(f's_mov_b32 s{sPitch}, 3584\n s_mul_i32 s{sOff}, s{sCG}, 224')
    vL16 = V.get(); vH = V.get(); vWoff = V.get()
    A(f'v_lshlrev_b32 v{vL16}, 4, v{vl}\n v_lshrrev_b32 v{vH}, 5, v{vl}')
    w224_dma_off(A, vWoff, vl, t, sPitch, sOff, sOff)
    A(f's_mul_i32 s{sA}, s{sTile}, {28*1024}\n s_add_u32 s{sA}, s{sA}, {X1_OFF}')
    A(f's_mul_i32 s{sB}, s{sW}, {16*3584}\n s_mul_i32 s{sM}, s{sW}, {4*896}')
    for c in range(7):
        A(EXEC56)
        for i in range(4):
            A(f's_add_u32 m0, s{sM}, {c*14336 + i*896}')
            A(f's_add_u32 s{sT}, s{sB}, {(c*64 + [0,2,8,10][i])*3584}')
            A(f'buffer_load_dwordx4 v{vWoff}, s[8:11], s{sT} offen lds', tag=('c', c))
        A(EXEC64)
        for s in range(4):
            A(f'buffer_load_dwordx4 a[{16*c+4*s}:{16*c+4*s+3}], v{vL16}, s[12:15], s{sA} offen offset:{s*1024}')
        if c < 6: A(f's_add_u32 s{sA}, s{sA}, 4096')
    stp = V.get(14, 2)
    A(f's_mul_i32 s{sT}, s{sTile}, {7*512}\n s_add_u32 s{sT}, s{sT}, {ST2_OFF}\n v_lshlrev_b32 v{t}, 3, v{vl}')
    for g in range(7): A(f'buffer_load_dwordx2 v[{stp+2*g}:{stp+2*g+1}], v{t}, s[12:15], s{sT} offen offset:{g*512}')
    vWa = [V.get() for f in range(4)]; vWb = [V.get() for f in range(4)]
    A(f'v_bfe_u32 v{t+1}, v{vl}, 2, 2\n v_lshl_add_u32 v{t+1}, v{t+1}, 1, v{vH}\n v_mul_u32_u24 v{t+1}, 224, v{t+1}')
    A(f'v_bfe_u32 v{t+2}, v{vl}, 4, 1\n v_lshlrev_b32 v{t+2}, 5, v{t+2}\n v_and_b32 v{t+3}, 3, v{vl}\n v_lshl_add_u32 v{t+2}, v{t+3}, 3, v{t+2}')
    for f in range(4):
        A(f'v_add_u32 v{t+3}, {64*f}, v{t+2}')
        if f == 3: A(f'v_min_u32 v{t+3}, 216, v{t+3}')
        A(f'v_add_u32 v{vWa[f]}, v{t+3}, v{t+1}\n v_add_u32 v{vWb[f]}, {16*3584}, v{vWa[f]}')
    vCa = V.get(); vCb = V.get()
    A(f's_lshl_b32 s{sT}, s{sW}, 6\n v_add_u32 v{t+3}, s{sT}, v{t+2}\n v_min_u32 v{t+3}, 216, v{t+3}\n v_add_u32 v{vCa}, v{t+3}, v{t+1}\n v_add_u32 v{vCb}, {16*3584}, v{vCa}')
    vOnes = V.get(4); ones_mask_frag(A, vOnes, vl, t+2)
    acc = [V.get(16) for f in range(4)]
    cs = V.get(4)
    fw = [[V.get(4) for f in range(5)] for b in range(2)]
    def reads(n):
        for f in range(5):
            ba, bb = (vWa[f], vWb[f]) if f < 4 else (vCa, vCb)
            base, o = (ba, n*3584) if n < 16 else (bb, (n-16)*3584)
            for sec in range(2):
                A(f'ds_read_b64_tr_b16 v[{fw[n&1][f]+2*sec}:{fw[n&1][f]+2*sec+1}], v{base} offset:{o + sec*1792}')
    A.wait(lg=0); A.wait_tag(('c', 0)); A.barrier(); reads(0)
    for n in range(28):
        if n + 1 < 28:
            if (n + 1) % 4 == 0:
                A.wait_tag(('c', (n+1)//4)); A.barrier()
            reads(n + 1)
        z = '0' if n == 0 else None
        for f in range(4): A(mfma32(acc[f], fw[n&1][f], ar(4*n, 4), z))
        A(mfma16(cs, vOnes, fw[n&1][4], z))
    stamp_mid(A, 1)
    for g in range(1, 7): A(pk('v_pk_add_f32', stp, stp, stp+2*g))
    xhalf(A, 'v_add_f32', stp, t); xhalf(A, 'v_add_f32', stp+1, t+1)
    vm, vr_ = stp+2, stp+3
    kk = stp+4; inv = stp+6
    A(f's_mov_b32 s{sT}, {fl(1.0/448)}')
    A(f'v_mul_f32 v{vm}, s{sT}, v{stp}\n v_mul_f32 v{t}, s{sT}, v{stp+1}\n v_fma_f32 v{t}, -v{vm}, v{vm}, v{t}\n v_max_f32 v{t}, 0, v{t}')
    A(f'v_add_f32 v{t}, {fl(1e-5)}, v{t}\n v_rsq_f32 v{vr_}, v{t}\n v_mul_f32 v{inv}, v{t}, v{vr_}')
    A(f'v_mul_f32 v{kk}, {fl(GELU_C1)}, v{vr_}\n v_mul_f32 v{t}, v{vr_}, v{vr_}\n v_mul_f32 v{t}, {fl(0.044715)}, v{t}\n v_mul_f32 v{kk+1}, v{t}, v{kk}')
    fa = V.get(80)
    cx = fa; cw = fa + 4
    corr_xfrag(A, cx, vm, None, t)
    A('s_mov_b32 s40, -1\n s_mov_b32 s41, 0')
    corr_wfrag(A, cw, cs, t, 's[40:41]')
    A.wait(lg=0); A.barrier()
    A(f'v_lshlrev_b32 v{t}, 3, v0\n ds_write_b64 v{t}, v[{cw}:{cw+1}]')
    A(f'v_lshlrev_b32 v{t+1}, 3, v{vl}')
    cws = [fa + 8 + 4*f for f in range(4)]
    for f in range(4): A(f'v_mov_b32 v{cws[f]+2}, 0\n v_mov_b32 v{cws[f]+3}, 0')
    A.wait(lg=0); A.barrier()
    for f in range(4): A(f'ds_read_b64 v[{cws[f]}:{cws[f]+1}], v{t+1} offset:{f*512}')
    for f in range(4): A(mfma32(acc[f], cws[f], cx))
    A(f's_mul_i32 s{sT}, s{sTile}, {112*1024}\n s_mul_i32 s{sT2}, s{sCG}, {7*1024}\n s_add_u32 s{sT}, s{sT}, s{sT2}\n s_add_u32 s{sT}, s{sT}, {H3_OFF}')
    A(f's_add_u32 s{sT2}, s{sT}, 4096')
    tt = fa + 32; ob = fa + 48
    for f in range(4):
        n = 16 if f < 3 else 8
        o = ob + 8*f
        gelu_pack(A, acc[f], n, kk, inv, tt, o)
        for i in range(n // 8):
            ks = 2*f + i
            A(f'buffer_store_dwordx4 v[{o+4*i}:{o+4*i+3}], v{vL16}, s[12:15], s{sT if ks < 4 else sT2} offen offset:{(ks % 4)*1024}')
    stamp_end(A, 2, 12)
    A.raw(f'{name}_done:')
    A('s_endpgm')
    A.raw(f'{name}_end:')
    return dict(name=name, grid=256, lds=K3_LDS, vgpr=A.maxv+1, sgpr=A.maxs+1, agpr=A.maxa+1)

K4_SLOTS = 8
K4_LDS = K4_SLOTS * 16384
def k4(A, name):
    A.new_kernel(name)
    stamp_begin(A)
    A('s_load_dwordx2 s[4:5], s[0:1], 0\n s_load_dwordx2 s[8:9], s[0:1], 64\n s_load_dwordx2 s[16:17], s[0:1], 24')
    A('s_load_dwordx2 s[12:13], s[0:1], 88\n s_load_dwordx2 s[20:21], s[0:1], 72')
    A('s_cmp_ge_u32 s2, 224')
    A.branch('s_cbranch_scc1', f'{name}_done')
    V = Alloc(1)
    vl = V.get(); t = V.get(8, 4); vpf = V.get(2)
    code_prefetch(A, None, f'{name}_end', t, vpf, 24)
    sW, sT, sT2, sTG, sCG, sA, sB, sTile, sMa, sMw, sO, sB2, sTT, sF = 3, *range(30, 43)
    lane_wave(A, vl, sW, t)
    srd(A, 4, 2048*896); srd(A, 8, 1792*896); srd(A, 16, 448*896); srd(A, 12, WS_SIZE); srd(A, 20, 2048*896)
    A(f's_and_b32 s{sTG}, s2, 7\n s_lshl_b32 s{sTG}, s{sTG}, 2\n s_bfe_u32 s{sT}, s2, 0x20003\n s_add_u32 s{sTG}, s{sTG}, s{sT}\n s_lshr_b32 s{sCG}, s2, 5')
    A(f's_and_b32 s{sTT}, s{sW}, 1\n s_lshr_b32 s{sF}, s{sW}, 1')
    A(f's_lshl_b32 s{sTile}, s{sTG}, 1\n s_add_u32 s{sTile}, s{sTile}, s{sTT}')
    vL16 = V.get(); vT31 = V.get(); vH = V.get(); vWoff = V.get()
    A(f'v_lshlrev_b32 v{vL16}, 4, v{vl}\n v_and_b32 v{vT31}, 31, v{vl}\n v_lshrrev_b32 v{vH}, 5, v{vl}')
    A(f's_lshl_b32 s{sT}, s{sCG}, 7')
    w128_dma_off(A, vWoff, vl, t, sT)
    A(f's_mul_i32 s{sA}, s{sTile}, {112*1024}\n s_lshl_b32 s{sT}, s{sF}, 11\n s_add_u32 s{sA}, s{sA}, s{sT}\n s_add_u32 s{sA}, s{sA}, {H3_OFF}')
    A(f's_lshl_b32 s{sO}, s{sTile}, 15\n s_add_u32 s{sO}, s{sO}, s{sT}\n s_add_u32 s{sO}, s{sO}, {O_OFF}')
    A(f's_lshl_b32 s{sMa}, s{sTT}, 12\n s_add_u32 s{sMa}, s{sMa}, s{sT}')
    A(f's_mul_i32 s{sB}, s{sW}, {16*896}\n s_lshl_b32 s{sMw}, s{sW}, 11\n s_add_u32 s{sMw}, s{sMw}, 8192')
    A(f's_mul_i32 s{sB2}, s{sF}, {28*896}\n s_mul_i32 s{sT}, s{sTT}, {16*896}\n s_add_u32 s{sB2}, s{sB2}, s{sT}')
    NCH = 36
    def issue(c):
        slot = (c % K4_SLOTS) * 16384
        A(f's_add_u32 m0, s{sMa}, {slot}')
        if c < 28: A(f's_add_u32 s{sT}, s{sA}, {c*4096}')
        else: A(f's_add_u32 s{sT}, s{sO}, {(c-28)*4096}')
        A(f'buffer_load_dwordx4 v{vL16}, s[12:15], s{sT} offen lds', tag=('c', c))
        A(f'buffer_load_dwordx4 v{vL16}, s[12:15], s{sT} offen offset:1024 lds', tag=('c', c))
        for i in range(2):
            A(f's_add_u32 m0, s{sMw}, {slot + i*1024}')
            if c < 28:
                A(f's_add_u32 s{sT}, s{sB}, {(c*64 + 8*i)*896}')
                A(f'buffer_load_dwordx4 v{vWoff}, s[8:11], s{sT} offen lds', tag=('c', c))
            else:
                A(f's_add_u32 s{sT}, s{sB2}, {((c-28)*56 + 8*i)*896}')
                A(f'buffer_load_dwordx4 v{vWoff}, s[16:19], s{sT} offen lds', tag=('c', c))
    for c in range(K4_SLOTS): issue(c)
    xr = V.get(8, 4); x1r = V.get(8, 4); vXo = V.get()
    A(f'v_mul_u32_u24 v{vXo}, 896, v{vT31}\n v_lshl_add_u32 v{vXo}, v{vH}, 4, v{vXo}')
    sXo = 43
    A(f's_mul_i32 s{sXo}, s{sTile}, {32*896}\n s_lshl_b32 s{sT}, s{sCG}, 7\n s_add_u32 s{sXo}, s{sXo}, s{sT}\n s_lshl_b32 s{sT}, s{sF}, 6\n s_add_u32 s{sXo}, s{sXo}, s{sT}')
    for i in range(2): A(f'buffer_load_dwordx4 v[{xr+4*i}:{xr+4*i+3}], v{vXo}, s[4:7], s{sXo} offen offset:{32*i}')
    A(f's_mul_i32 s{sT}, s{sTile}, {28*1024}\n s_lshl_b32 s{sT2}, s{sCG}, 12\n s_add_u32 s{sT}, s{sT}, s{sT2}\n s_lshl_b32 s{sT2}, s{sF}, 11\n s_add_u32 s{sT}, s{sT}, s{sT2}\n s_add_u32 s{sT}, s{sT}, {X1_OFF}')
    for i in range(2): A(f'buffer_load_dwordx4 v[{x1r+4*i}:{x1r+4*i+3}], v{vL16}, s[12:15], s{sT} offen offset:{i*1024}')
    nb = (K4_SLOTS + 3) // 4
    vAa = [V.get() for i in range(nb)]; vWa = [V.get() for i in range(nb)]
    w128_read_addr(A, vWa[0], vl, t)
    A(f's_lshl_b32 s{sT}, s{sF}, 6\n v_xor_b32 v{vWa[0]}, s{sT}, v{vWa[0]}\n v_add_u32 v{vWa[0]}, 8192, v{vWa[0]}')
    A(f's_lshl_b32 s{sT}, s{sTT}, 12\n v_add_u32 v{vAa[0]}, s{sT}, v{vL16}')
    for i in range(1, nb): A(f'v_add_u32 v{vAa[i]}, {i*65536}, v{vAa[0]}\n v_add_u32 v{vWa[i]}, {i*65536}, v{vWa[0]}')
    acc = [V.get(16), V.get(16)]
    fa = [[V.get(4) for s in range(4)] for b in range(2)]
    fw = [[V.get(4) for s in range(4)] for b in range(2)]
    def reads(c):
        slot = c % K4_SLOTS; o = (slot % 4) * 16384; b = c & 1
        for s in range(4):
            A(f'ds_read_b128 v[{fa[b][s]}:{fa[b][s]+3}], v{vAa[slot//4]} offset:{o + s*1024}')
            for sec in range(2):
                A(f'ds_read_b64_tr_b16 v[{fw[b][s]+2*sec}:{fw[b][s]+2*sec+1}], v{vWa[slot//4]} offset:{o + s*2048 + sec*1024}')
    A.wait_tag(('c', 0)); A.barrier(); reads(0)
    for c in range(NCH):
        if c + 1 < NCH:
            A.wait(lg=0); A.wait_tag(('c', c+1)); A.barrier()
            reads(c + 1)
            if c + K4_SLOTS < NCH: issue(c + K4_SLOTS)
        a = acc[0] if c < 28 else acc[1]
        for s in range(4): A(mfma32(a, fw[c&1][s], fa[c&1][s], '0' if (s == 0 and c in (0, 28)) else None))
    stamp_mid(A, 1)
    xf = V.get(16); y = V.get(16); e = V.get(16); cc = V.get(2)
    unpack_x_tile(A, xr, xf); unpack16(A, x1r, y)
    A(f'v_mov_b32 v{cc}, {fl(-LOG2E)}\n v_mov_b32 v{cc+1}, 1.0')
    for i in range(0, 16, 2): A(pk('v_pk_add_f32', y+i, y+i, acc[0]+i))
    for i in range(0, 16, 2): A(pk('v_pk_mul_f32', e+i, y+i, cc, selhi=[1,0]))
    for i in range(16): A(f'v_exp_f32 v{e+i}, v{e+i}')
    for i in range(0, 16, 2): A(pk('v_pk_add_f32', e+i, e+i, cc, sel=[0,1], selhi=[1,1]))
    for i in range(16): A(f'v_rcp_f32 v{e+i}, v{e+i}')
    for i in range(0, 16, 2): A(pk('v_pk_mul_f32', y+i, y+i, e+i))
    for i in range(0, 16, 2): A(pk('v_pk_fma_f32', y+i, y+i, acc[1]+i, xf+i))
    for i in range(8): A(f'v_cvt_pk_bf16_f32 v{xr+i}, v{y+2*i}, v{y+2*i+1}')
    for j in range(2):
        A(f'v_permlane32_swap_b32 v{xr+4*j}, v{xr+4*j+2}\n v_permlane32_swap_b32 v{xr+4*j+1}, v{xr+4*j+3}')
        A(f'buffer_store_dwordx4 v[{xr+4*j}:{xr+4*j+3}], v{vXo}, s[20:23], s{sXo} offen offset:{32*j}')
    stamp_end(A, 3, 12)
    A.raw(f'{name}_done:')
    A('s_endpgm')
    A.raw(f'{name}_end:')
    return dict(name=name, grid=224, lds=K4_LDS, vgpr=A.maxv+1, sgpr=A.maxs+1)

def header():
    ref = open(f'cdna_kernels/{NAME}.s.ref').read().split('\n')
    return [l for l in ref if l.startswith(';') and '@launch' not in l and 'Override' not in l and 'grid=ceil' not in l]

def build(path):
    A = Asm()
    ks = [k1(A, 'hh1_kernel'), k2(A, 'hh2_kernel'), k3(A, 'hh3_kernel'), k4(A, 'hh4_kernel')]
    out = header()
    for k in ks: out.append(f"; @launch kernel={k['name']} grid=({k['grid']},1,1) block=(256,1,1) lds={k['lds']}")
    out.append('.amdgcn_target "amdgcn-amd-amdhsa--gfx950"\n.text')
    out.append(A.text())
    out.append('.section .rodata,"a"')
    for k in ks:
        vg = k['vgpr']; ao = (vg + 3) // 4 * 4
        if k.get('agpr'): vg = ao + k['agpr']
        out.append(f""".p2align 6
.amdhsa_kernel {k['name']}
  .amdhsa_next_free_vgpr {vg}
  .amdhsa_next_free_sgpr {k['sgpr']}
  .amdhsa_accum_offset {ao}
  .amdhsa_group_segment_fixed_size 0
  .amdhsa_kernarg_size 96
  .amdhsa_user_sgpr_count 2
  .amdhsa_user_sgpr_kernarg_segment_ptr 1
  .amdhsa_system_sgpr_workgroup_id_x 1
.end_amdhsa_kernel""")
    open(path, 'w').write('\n'.join(out) + '\n')
    for k in ks: print(k)
    print('nops', A.nops)

if __name__ == '__main__':
    Opt.stamps = False
    build(f'cdna_kernels/{NAME}.s')
    Opt.stamps = True
    build('dbg.s')
```

```python
import sys, struct
from emit import *

NAME = 'recurrent_scan__linear_kernel_hedgehog__mixer_s_mlp__prompt'
HS_OFF, PQ_OFF, KVP_OFF, ST1_OFF, X1_OFF, ST2_OFF, O_OFF, H3_OFF = 0, 0x200000, 0x400000, 0x600000, 0x640000, 0x800000, 0x880000, 0xB00000
STAMP_OFF = 0x2000000
WS_SIZE = 0x3000000
LOG2E = 1.4426950408889634
def f2u(x): return struct.unpack('<I', struct.pack('<f', x))[0]
def fl(x): return hex(f2u(x))
GELU_C1 = -2.0 * 0.7978845608028654 * LOG2E
GELU_C3 = GELU_C1 * 0.044715

class Opt:
    stamps = False
    prefetch = True
    x = ''

def srd(A, b, size):
    A(f's_mov_b32 s{b+2}, {hex(size)}\n s_mov_b32 s{b+3}, 0x00020000')

def stamp_begin(A):
    if Opt.stamps: A('s_memrealtime s[90:91]')
def stamp_mid(A, i):
    if Opt.stamps: A(f's_memrealtime s[{90+2*i}:{91+2*i}]')
def stamp_end(A, kidx, ws_srd):
    if not Opt.stamps: return
    A('s_memrealtime s[96:97]')
    A(f's_lshl_b32 s98, s2, 6\n s_lshl_b32 s99, s3, 4\n s_add_u32 s98, s98, s99\n s_add_u32 s98, s98, {STAMP_OFF + kidx*0x10000}')
    A('v_mov_b32 v4, s90\n v_mov_b32 v5, s92\n v_mov_b32 v6, s94\n v_mov_b32 v7, s96\n v_mov_b32 v1, 0')
    A('s_mov_b64 exec, 1')
    A(f'buffer_store_dwordx4 v[4:7], v1, s[{ws_srd}:{ws_srd+3}], s98 offen')

def code_prefetch(A, label, endlabel, vtmp, vdst, s4, rounds=1):
    if not Opt.prefetch: return
    A(f's_getpc_b64 s[{s4}:{s4+1}]')
    lab = f'.Lpc{len(A.out)}'
    A.raw(f'{lab}:')
    if label is not None:
        A(f's_add_u32 s{s4}, s{s4}, {label}-{lab}')
        A(f's_addc_u32 s{s4+1}, s{s4+1}, 0')
    A(f's_mov_b32 s{s4+2}, {endlabel}-{label or lab}\n s_mov_b32 s{s4+3}, 0x00020000')
    A(f'v_lshlrev_b32 v{vtmp}, 6, v0')
    for r in range(rounds):
        if r: A(f'v_add_u32 v{vtmp}, 0x4000, v{vtmp}')
        A(f'buffer_load_dword v{vdst+r}, v{vtmp}, s[{s4}:{s4+3}], 0 offen', tag='pf')

def pk(op, d, a, b, c=None, sel=None, selhi=None, neg=None):
    n = 3 if c is not None else 2
    s = f'{op} v[{d}:{d+1}], v[{a}:{a+1}], v[{b}:{b+1}]' + (f', v[{c}:{c+1}]' if c is not None else '')
    if sel: s += ' op_sel:[' + ','.join(map(str, sel)) + ']'
    if selhi: s += ' op_sel_hi:[' + ','.join(map(str, selhi)) + ']'
    if neg: s += ' neg_lo:[' + ','.join(map(str, neg)) + '] neg_hi:[' + ','.join(map(str, neg)) + ']'
    return s

def xhalf(A, op, r, t):
    A(f'v_mov_b32 v{t}, v{r}')
    A(f'v_permlane32_swap_b32 v{r}, v{t}')
    A(f'{op} v{r}, v{r}, v{t}')

def softmax_pair(A, p, cb, e, outp, outn, tmp, scale=None):
    mx, mn, t0 = tmp, tmp + 1, tmp + 2
    A(f'v_max3_f32 v{mx}, v{p}, v{p+1}, v{p+2}')
    A(f'v_min3_f32 v{mn}, v{p}, v{p+1}, v{p+2}')
    for i in range(3, 13, 2):
        A(f'v_max3_f32 v{mx}, v{mx}, v{p+i}, v{p+i+1}')
        A(f'v_min3_f32 v{mn}, v{mn}, v{p+i}, v{p+i+1}')
    A(f'v_max_f32 v{mx}, v{mx}, v{p+13}')
    A(f'v_min_f32 v{mn}, v{mn}, v{p+13}')
    A(f'v_mov_b32 v{t0}, v{mx}\n v_mov_b32 v{t0+1}, v{mn}')
    A(f'v_permlane32_swap_b32 v{mx}, v{t0}\n v_permlane32_swap_b32 v{mn}, v{t0+1}')
    A(f'v_max_f32 v{mx}, v{mx}, v{t0}\n v_min_f32 v{mn}, v{mn}, v{t0+1}')
    for sign, ext, out in ((0, mx, outp), (1, mn, outn)):
        A(f'v_mul_f32 v{cb+1}, v{cb}, v{ext}')
        for i in range(0, 14, 2):
            A(pk('v_pk_fma_f32', e+i, p+i, cb, cb, sel=[0,0,1], selhi=[1,0,1], neg=[0,0,1] if sign == 0 else [1,0,0]))
        for i in range(14): A(f'v_exp_f32 v{e+i}, v{e+i}')
        A(pk('v_pk_add_f32', t0, e, e+2))
        for i in range(4, 14, 2): A(pk('v_pk_add_f32', t0, t0, e+i))
        A(f'v_add_f32 v{t0}, v{t0}, v{t0+1}')
        xhalf(A, 'v_add_f32', t0, t0+1)
        A(f'v_rcp_f32 v{t0}, v{t0}')
        if scale is not None: A(f'v_mul_f32 v{t0}, v{t0}, v{scale}')
        for i in range(0, 14, 2):
            A(pk('v_pk_mul_f32', e+i, e+i, t0, selhi=[1,0]))
        for i in range(7): A(f'v_cvt_pk_bf16_f32 v{out+i}, v{e+2*i}, v{e+2*i+1}')
        A(f'v_mov_b32 v{out+7}, 0')

def gelu_pack(A, a, n, kk, inv, t, out):
    for i in range(0, n, 2): A(pk('v_pk_mul_f32', t+i, a+i, a+i))
    for i in range(0, n, 2): A(pk('v_pk_fma_f32', t+i, t+i, kk, kk, sel=[0,1,0], selhi=[1,1,0]))
    for i in range(0, n, 2): A(pk('v_pk_mul_f32', t+i, t+i, a+i))
    for i in range(n): A(f'v_exp_f32 v{t+i}, v{t+i}')
    for i in range(0, n, 2): A(pk('v_pk_fma_f32', t+i, t+i, inv, inv, selhi=[1,0,0]))
    for i in range(n): A(f'v_rcp_f32 v{t+i}, v{t+i}')
    for i in range(0, n, 2): A(pk('v_pk_mul_f32', t+i, t+i, a+i))
    for i in range(0, n, 2): A(f'v_cvt_pk_bf16_f32 v{out+i//2}, v{t+i}, v{t+i+1}')

def _op4(x): return x if isinstance(x, str) else f'v[{x}:{x+3}]'
def mfma32(d, a, b, c=None):
    cs = f'v[{d}:{d+15}]' if c is None else c
    return f'v_mfma_f32_32x32x16_bf16 v[{d}:{d+15}], {_op4(a)}, {_op4(b)}, {cs}'
def mfma16(d, a, b, c=None):
    cs = f'v[{d}:{d+3}]' if c is None else c
    return f'v_mfma_f32_16x16x32_bf16 v[{d}:{d+3}], {_op4(a)}, {_op4(b)}, {cs}'

def lane_wave(A, vl, sw, vt):
    A(f'v_lshrrev_b32 v{vt}, 6, v0\n v_and_b32 v{vl}, 63, v0\n v_readfirstlane_b32 s{sw}, v{vt}')

def ones_mask_frag(A, d, vl, t):
    A(f'v_lshrrev_b32 v{t}, 2, v{vl}')
    A(f'v_lshrrev_b32 v{t+1}, 4, v{vl}')
    A(f'v_xor_b32 v{t}, v{t}, v{t+1}')
    A(f'v_and_b32 v{t}, 1, v{t}')
    A(f'v_and_b32 v{t+1}, 3, v{vl}')
    A(f'v_or_b32 v{t}, v{t}, v{t+1}')
    A(f'v_cmp_eq_u32 vcc, 0, v{t}')
    A(f'v_mov_b32 v{t+1}, 0x3f803f80')
    A(f'v_cndmask_b32 v{d}, 0, v{t+1}, vcc')
    A(f'v_mov_b32 v{d+1}, v{d}\n v_mov_b32 v{d+2}, v{d}\n v_mov_b32 v{d+3}, v{d}')

def w224_dma_off(A, d, vl, t, s_pitch, s_offA, s_offB):
    A(f'v_mul_u32_u24 v{t}, 4682, v{vl}')
    A(f'v_lshrrev_b32 v{t}, 16, v{t}')
    A(f'v_mul_u32_u24 v{t+1}, 14, v{t}')
    A(f'v_sub_u32 v{t+1}, v{vl}, v{t+1}')
    A(f'v_lshrrev_b32 v{t+2}, 1, v{t}')
    A(f'v_and_b32 v{t}, 1, v{t}')
    A(f'v_lshl_add_u32 v{t}, v{t}, 2, v{t+2}')
    A(f'v_mul_lo_u32 v{t}, v{t}, s{s_pitch}')
    A(f'v_lshl_add_u32 v{t}, v{t+1}, 4, v{t}')
    A(f'v_cmp_gt_u32 vcc, 7, v{t+1}')
    A(f'v_mov_b32 v{t+1}, s{s_offA}\n v_mov_b32 v{t+2}, s{s_offB}')
    A(f'v_cndmask_b32 v{t+1}, v{t+2}, v{t+1}, vcc')
    A(f'v_add_u32 v{d}, v{t}, v{t+1}')

EXEC56 = 's_mov_b32 exec_hi, 0x00ffffff'
EXEC64 = 's_mov_b32 exec_hi, -1'

def corr_xfrag(A, d, m, sig, t):
    A(f'v_cvt_pk_bf16_f32 v{d}, -v{m}, -v{m}')
    A(f'v_and_b32 v{t}, 0xffff0000, v{d}')
    A(f'v_sub_f32 v{t}, -v{m}, v{t}') if False else A(f'v_add_f32 v{t}, v{m}, v{t}')
    if sig is not None:
        A(f'v_cvt_pk_bf16_f32 v{d+1}, -v{t}, v{sig}')
        A(f'v_and_b32 v{t}, 0xffff0000, v{d+1}')
        A(f'v_sub_f32 v{t}, v{sig}, v{t}')
        A(f'v_cvt_pk_bf16_f32 v{d+2}, v{t}, 0')
    else:
        A(f'v_cvt_pk_bf16_f32 v{d+1}, -v{t}, 0')
        A(f'v_mov_b32 v{d+2}, 0')
    A(f'v_mov_b32 v{d+3}, 0')

def corr_wfrag(A, d, cs, t, lomask):
    A(f'v_cndmask_b32 v{t}, 0, v{cs}, {lomask}')
    A(f'v_cvt_pk_bf16_f32 v{d+1}, v{t}, 0')
    A(f'v_lshlrev_b32 v{d+2}, 16, v{d+1}')
    A(f'v_sub_f32 v{d+2}, v{t}, v{d+2}')
    A(f'v_cvt_pk_bf16_f32 v{d}, v{t}, v{d+2}')
    A(f'v_mov_b32 v{d+2}, 0\n v_mov_b32 v{d+3}, 0')

K1_XR, K1_WR, K1_EX = 0, 81920, 81920 + 5*14336
K1_LDS = K1_EX + 2048

def k1(A, name):
    A.new_kernel(name)
    stamp_begin(A)
    A('s_load_dwordx2 s[4:5], s[0:1], 0\n s_load_dwordx2 s[20:21], s[0:1], 8\n s_load_dwordx2 s[16:17], s[0:1], 16')
    A('s_load_dwordx2 s[22:23], s[0:1], 40\n s_load_dwordx2 s[12:13], s[0:1], 88')
    A('s_cmp_ge_u32 s2, 256')
    A.branch('s_cbranch_scc1', f'{name}_done')
    V = Alloc(1)
    vl = V.get(); t = V.get(8, 4); vpf = V.get(2)
    code_prefetch(A, None, f'{name}_end', t, vpf, 24, rounds=2)
    sW, sRG, sCG, sTP, sJ, sPitch, sOffA, sOffB, sCb0, sCb1, sC, sXb, sXc, sWc, sT, sP64, sWb, sMx, sMw, sT2 = 3, *range(30, 49)
    lane_wave(A, vl, sW, t)
    A(f's_and_b32 s{sRG}, s2, 7\n s_lshl_b32 s{sRG}, s{sRG}, 1\n s_bfe_u32 s{sT}, s2, 0x10003\n s_add_u32 s{sRG}, s{sRG}, s{sT}')
    A(f's_lshr_b32 s{sCG}, s2, 4')
    A(f's_and_b32 s{sTP}, s{sW}, 1\n s_lshr_b32 s{sJ}, s{sW}, 1')
    A(f's_and_b32 s{sT}, s{sCG}, 3\n s_mul_i32 s{sOffA}, s{sT}, 224\n s_mov_b32 s{sOffB}, s{sOffA}')
    A(f's_mul_i32 s{sT}, s{sCG}, 112\n s_add_u32 s{sT2}, s{sT}, 896\n s_add_u32 s{sT}, s{sT}, {1792-112}')
    A(f's_cmp_lt_u32 s{sCG}, 8\n s_cselect_b32 s{sOffA}, s{sT2}, s{sOffA}\n s_cselect_b32 s{sOffB}, s{sT}, s{sOffB}')
    A(f's_cselect_b32 s{sT}, 56, 112\n s_cselect_b32 s{sT2}, 112, 56')
    A(f's_cmp_ge_u32 s{sCG}, 12\n s_cselect_b32 s{sT}, 128, s{sT}\n s_cselect_b32 s{sT2}, 64, s{sT2}')
    A(f's_mov_b32 s{sPitch}, 2688\n s_cselect_b32 s{sPitch}, 896, s{sPitch}')
    A(f's_mov_b32 s10, {448*2688}\n s_cselect_b32 s10, {448*896}, s10\n s_mov_b32 s11, 0x00020000')
    A(f's_mul_i32 s{sCb0}, s{sJ}, s{sT}\n s_add_u32 s{sCb1}, s{sCb0}, s{sT2}')
    srd(A, 4, 2048*896); srd(A, 12, WS_SIZE); srd(A, 16, 16*28*28*2)
    A(f's_add_u32 s{sC}, s{sCG}, s{sRG}\n s_mul_i32 s{sT}, s{sC}, 37\n s_lshr_b32 s{sT}, s{sT}, 8\n s_mul_i32 s{sT}, s{sT}, 7\n s_sub_u32 s{sC}, s{sC}, s{sT}')
    A(f's_lshl_b32 s{sP64}, s{sPitch}, 6')
    A(f's_lshl_b32 s{sXb}, s{sRG}, 4\n s_add_u32 s{sXb}, s{sXb}, s{sW}\n s_mul_i32 s{sXb}, s{sXb}, {8*896}')
    A(f's_lshl_b32 s{sMx}, s{sW}, 10')
    A(f's_lshl_b32 s{sWb}, s{sW}, 4\n s_mul_i32 s{sWb}, s{sWb}, s{sPitch}\n s_mul_i32 s{sMw}, s{sW}, {4*896}\n s_add_u32 s{sMw}, s{sMw}, {K1_WR}')
    sP2, sP8, sP10 = 49, 50, 51
    A(f's_lshl_b32 s{sP2}, s{sPitch}, 1\n s_lshl_b32 s{sP8}, s{sPitch}, 3\n s_add_u32 s{sP10}, s{sP2}, s{sP8}')
    vXoff = V.get(); vWoff = V.get()
    A(f'v_lshrrev_b32 v{t}, 3, v{vl}\n v_mul_u32_u24 v{t}, 896, v{t}')
    A(f'v_lshrrev_b32 v{t+1}, 4, v{vl}\n s_lshl_b32 s{sT}, s{sTP}, 2\n v_or_b32 v{t+1}, s{sT}, v{t+1}')
    A(f'v_and_b32 v{t+2}, 7, v{vl}\n v_xor_b32 v{t+1}, v{t+1}, v{t+2}\n v_lshl_add_u32 v{vXoff}, v{t+1}, 4, v{t}')
    w224_dma_off(A, vWoff, vl, t, sPitch, sOffA, sOffB)
    A(f's_cmp_ge_u32 s{sCG}, 12')
    A('s_cselect_b32 s8, s22, s20\n s_cselect_b32 s9, s23, s21')

    def issue_chunk(ci):
        slot = ci % 5
        A(f's_lshl_b32 s{sXc}, s{sC}, 7\n s_add_u32 s{sXc}, s{sXc}, s{sXb}')
        A(f's_mul_i32 s{sWc}, s{sC}, s{sP64}\n s_add_u32 s{sWc}, s{sWc}, s{sWb}')
        for i in range(4):
            A(f's_add_u32 m0, s{sMx}, {K1_XR + slot*16384 + i*4096}')
            if i: A(f's_add_u32 s{sXc}, s{sXc}, {32*896}')
            A(f'buffer_load_dwordx4 v{vXoff}, s[4:7], s{sXc} offen lds', tag=('c', ci))
        A(EXEC56)
        for i in range(4):
            A(f's_add_u32 m0, s{sMw}, {slot*14336 + i*896}')
            if i == 0: so = sWc
            else:
                A(f's_add_u32 s{sT}, s{sWc}, s{[0, sP2, sP8, sP10][i]}'); so = sT
            A(f'buffer_load_dwordx4 v{vWoff}, s[8:11], s{so} offen lds', tag=('c', ci))
        A(EXEC64)
        A(f's_add_u32 s{sC}, s{sC}, 1\n s_cmp_eq_u32 s{sC}, 7\n s_cselect_b32 s{sC}, 0, s{sC}')
    for ci in range(5): issue_chunk(ci)

    vXa = [[V.get() for s in range(4)] for e in range(2)]
    vXb = [[V.get() for s in range(4)] for e in range(2)]
    vWa = [V.get() for e in range(2)]; vWb = [V.get() for e in range(2)]
    vT31 = V.get(); vH = V.get()
    A(f'v_and_b32 v{vT31}, 31, v{vl}\n v_lshrrev_b32 v{vH}, 5, v{vl}')
    A(f'v_bfe_u32 v{t}, v{vl}, 1, 3\n v_xor_b32 v{t}, v{t}, v{vH}')
    sTile0, sTile1 = 52, 53
    A(f's_lshl_b32 s{sTile0}, s{sTP}, 1\n s_add_u32 s{sTile0}, s{sTile0}, s{sJ}\n s_xor_b32 s{sTile1}, s{sTile0}, 1')
    A(f's_lshl_b32 s{sT}, s{sTile0}, 12\n v_lshlrev_b32 v{t+1}, 7, v{vT31}\n v_add_u32 v{t+1}, s{sT}, v{t+1}')
    for s in range(4):
        A(f'v_xor_b32 v{t+2}, {2*s}, v{t}\n v_lshl_add_u32 v{vXa[0][s]}, v{t+2}, 4, v{t+1}')
        A(f'v_xor_b32 v{vXa[1][s]}, 0x1000, v{vXa[0][s]}')
        A(f'v_add_u32 v{vXb[0][s]}, 0x10000, v{vXa[0][s]}\n v_add_u32 v{vXb[1][s]}, 0x10000, v{vXa[1][s]}')
    A(f'v_bfe_u32 v{t}, v{vl}, 2, 2\n v_lshl_add_u32 v{t}, v{vH}, 2, v{t}\n v_mul_u32_u24 v{t}, 448, v{t}\n v_add_u32 v{t}, {K1_WR}, v{t}')
    A(f'v_bfe_u32 v{t+1}, v{vl}, 4, 1\n v_lshlrev_b32 v{t+1}, 5, v{t+1}\n v_and_b32 v{t+2}, 3, v{vl}\n v_lshl_add_u32 v{t+1}, v{t+2}, 3, v{t+1}')
    A(f'v_add3_u32 v{vWa[0]}, s{sCb0}, v{t}, v{t+1}')
    A(f'v_add_u32 v{t+1}, s{sCb1}, v{t+1}\n v_min_u32 v{t+1}, 216, v{t+1}\n v_add_u32 v{vWa[1]}, v{t}, v{t+1}')
    A(f'v_add_u32 v{vWb[0]}, {4*14336}, v{vWa[0]}\n v_add_u32 v{vWb[1]}, {4*14336}, v{vWa[1]}')
    vOnes = V.get(4); ones_mask_frag(A, vOnes, vl, t)
    acc = [[V.get(16) for e in range(2)] for f in range(2)]
    cs = [V.get(4) for f in range(2)]
    fx = [[V.get(4) for e in range(2)] for b in range(2)]
    fw = [[V.get(4) for f in range(2)] for b in range(2)]
    vS = V.get(2); vQ = V.get(2)
    A(f'v_mov_b32 v{vS}, 0\n v_mov_b32 v{vS+1}, 0\n v_mov_b32 v{vQ}, 0\n v_mov_b32 v{vQ+1}, 0')
    wphi = [V.get(8, 4) for i in range(2)]
    vPo = V.get(); vPo2 = V.get()
    A(f'v_cmp_lt_u32 vcc, 27, v{vT31}\n v_subrev_u32 v{t}, 2, v{vT31}\n v_cndmask_b32 v{t}, v{vT31}, v{t}, vcc')
    A(f'v_mul_u32_u24 v{t+1}, 112, v{vH}\n v_add_lshl_u32 v{vPo}, v{t}, v{t+1}, 1')
    A(f'v_and_b32 v{t}, 26, v{vT31}\n v_cmp_eq_u32 vcc, 26, v{t}\n v_mov_b32 v{t+1}, 0x7fff0000\n v_cndmask_b32 v{vPo}, v{vPo}, v{t+1}, vcc')
    A(f'v_cmp_eq_u32 vcc, 1, v{vH}\n v_cndmask_b32 v{vPo2}, v{vPo}, v{t+1}, vcc')
    wraw = [V.get(16) for i in range(2)]
    def load_wphi(idx, shead):
        for i in range(2):
            for j in range(8):
                d0 = (j & 3) + 8*(2*i + (j >> 2))
                off = vPo2 if d0 >= 24 else vPo
                A(f'buffer_load_ushort v{wraw[idx] + 8*i + j}, v{off}, s[16:19], s{shead} offen offset:{d0*56}', tag='wphi')
    def pack_wphi(idx):
        for i in range(8): A(f'v_lshl_or_b32 v{wphi[idx]+i}, v{wraw[idx]+2*i+1}, 16, v{wraw[idx]+2*i}')

    def reads(n):
        ci, s = divmod(n, 4); slot = ci % 5; b = n & 1
        for e in range(2):
            if slot < 4: A(f'ds_read_b128 v[{fx[b][e]}:{fx[b][e]+3}], v{vXa[e][s]} offset:{slot*16384}')
            else: A(f'ds_read_b128 v[{fx[b][e]}:{fx[b][e]+3}], v{vXb[e][s]}')
        for f in range(2):
            for sec in range(2):
                base, o = (vWa[f], slot*14336) if slot < 4 else (vWb[f], 0)
                A(f'ds_read_b64_tr_b16 v[{fw[b][f]+2*sec}:{fw[b][f]+2*sec+1}], v{base} offset:{o + s*3584 + sec*224}')
    def stats(n, part):
        x = fx[n & 1][0] + part
        A(f'v_lshlrev_b32 v{t}, 16, v{x}\n v_and_b32 v{t+1}, 0xffff0000, v{x}')
        A(f'v_add_f32 v{vS}, v{vS}, v{t}\n v_add_f32 v{vS+1}, v{vS+1}, v{t+1}')
        A(f'v_fmac_f32 v{vQ}, v{t}, v{t}\n v_fmac_f32 v{vQ+1}, v{t+1}, v{t+1}')
    def mainloop(kv, midhook):
        A.wait_tag(('c', 0)); A.barrier(); reads(0)
        for n in range(28):
            b = n & 1; z = '0' if n == 0 else None
            if n + 1 < 28:
                if (n + 1) % 4 == 0:
                    ci = (n + 1) // 4
                    A.wait(lg=0); A.wait_tag(('c', ci)); A.barrier()
                    reads(n + 1)
                    if ci + 4 <= 6: issue_chunk(ci + 4)
                    if ci == 3: midhook()
                else:
                    reads(n + 1)
            k = 0
            for f in range(2):
                for e in range(2):
                    if kv and f == 1: A(mfma32(acc[f][e], fx[b][e], fw[b][f], z))
                    else: A(mfma32(acc[f][e], fw[b][f], fx[b][e], z))
                    stats(n, k); k += 1
                A(mfma16(cs[f], vOnes, fw[b][f], z))
    st_m = [V.get() for e in range(2)]; st_var = [V.get() for e in range(2)]; st_r = [V.get() for e in range(2)]; st_sig = [V.get() for e in range(2)]
    cx = [V.get(4) for e in range(2)]; cw = [V.get(4) for f in range(2)]
    ex = V.get(8, 4)
    def finish_stats():
        A(f'v_add_f32 v{vS}, v{vS}, v{vS+1}\n v_add_f32 v{vS+1}, v{vQ}, v{vQ+1}')
        A(f's_lshl_b32 s{sT}, s{sTile0}, 9\n s_add_u32 s{sT}, s{sT}, {K1_EX}')
        A(f'v_lshl_add_u32 v{t}, v{vl}, 3, s{sT}')
        A(f'ds_write_b64 v{t}, v[{vS}:{vS+1}]')
        A(f'v_lshl_add_u32 v{t}, v{vT31}, 3, s{sT}\n v_xor_b32 v{t+1}, 0x200, v{t}')
        A.wait(lg=0); A.barrier()
        for e in range(2):
            A(f'ds_read_b64 v[{ex+4*e}:{ex+4*e+1}], v{t+e}\n ds_read_b64 v[{ex+4*e+2}:{ex+4*e+3}], v{t+e} offset:256')
        A(f's_mov_b32 s{sT}, {fl(1.0/448)}')
        for e in range(2):
            x = ex + 4*e
            A(f'v_add_f32 v{x}, v{x}, v{x+2}\n v_add_f32 v{x+1}, v{x+1}, v{x+3}')
            A(f'v_mul_f32 v{st_m[e]}, s{sT}, v{x}\n v_mul_f32 v{x+1}, s{sT}, v{x+1}')
            A(f'v_fma_f32 v{x+1}, -v{st_m[e]}, v{st_m[e]}, v{x+1}\n v_max_f32 v{st_var[e]}, 0, v{x+1}')
            A(f'v_add_f32 v{x}, {fl(1e-5)}, v{st_var[e]}\n v_rsq_f32 v{st_r[e]}, v{x}\n v_mul_f32 v{st_sig[e]}, v{x}, v{st_r[e]}')
    assert K1_EX % 1024 == 0
    sLo = 54
    A('s_mov_b32 s54, -1\n s_mov_b32 s55, 0\n s_mov_b32 s56, 0x0fffffff\n s_mov_b32 s57, 0')
    sH0, sH1 = 58, 59
    V.free(vXa, vXb, vWa, vWb, vOnes, fx, fw, vPo, vPo2, vXoff, vWoff)
    vtop = V.snap()

    A(f's_cmp_ge_u32 s{sCG}, 8')
    A.branch('s_cbranch_scc1', f'{name}_qw')
    A(f's_lshl_b32 s{sH0}, s{sCG}, 1\n s_add_u32 s{sH0}, s{sH0}, s{sJ}\n s_mul_i32 s{sH1}, s{sH0}, 1568')
    mainloop(True, lambda: load_wphi(0, sH1))
    stamp_mid(A, 1)
    finish_stats()
    V.restore(vtop)
    idf = V.get(8, 4)
    A(f'v_bfe_u32 v{t}, v{vl}, 2, 1\n v_cmp_eq_u32 vcc, v{t}, v{vH}')
    A(f'v_and_b32 v{t}, 1, v{vl}\n v_lshlrev_b32 v{t}, 4, v{t}\n v_mov_b32 v{t+1}, 0x3f80\n v_lshlrev_b32 v{t+1}, v{t}, v{t+1}')
    A(f'v_cndmask_b32 v{t+1}, 0, v{t+1}, vcc')
    A(f'v_bfe_u32 v{t}, v{vl}, 1, 1\n v_bfe_u32 v{t+2}, v{vl}, 3, 2\n v_lshl_add_u32 v{t}, v{t+2}, 1, v{t}')
    for d in range(8):
        A(f'v_cmp_eq_u32 vcc, {d}, v{t}\n v_cndmask_b32 v{idf+d}, 0, v{t+1}, vcc')
    for e in range(2): corr_xfrag(A, cx[e], st_m[e], st_sig[e], t)
    corr_wfrag(A, cw[0], cs[0], t, 's[54:55]')
    corr_wfrag(A, cw[1], cs[1], t, 's[56:57]')
    A('s_mov_b32 exec_lo, 0x10000000\n s_mov_b32 exec_hi, 0')
    A(f'v_mov_b32 v{cw[1]+1}, 0x3f800000\n v_mov_b32 v{cw[1]+2}, 0x3f80')
    A('s_mov_b32 exec_lo, 0xf0000000\n s_mov_b32 exec_hi, 0xf0000000')
    for e in range(2):
        for r in range(16): A(f'v_mov_b32 v{acc[1][e]+r}, 0')
    A('s_mov_b64 exec, -1')
    for e in range(2):
        A(mfma32(acc[0][e], cw[0], cx[e]))
    for e in range(2):
        A(mfma32(acc[1][e], cx[e], cw[1]))
    pack_wphi(0); V.free(wraw, wphi[1], ex, vS, vQ)
    kb = [V.get(8, 4) for e in range(2)]; vb = [V.get(8, 4) for e in range(2)]
    pkk = [V.get(16) for e in range(2)]
    for e in range(2):
        for i in range(8): A(f'v_cvt_pk_bf16_f32 v{kb[e]+i}, v{acc[0][e]+2*i}, v{acc[0][e]+2*i+1}')
        A(mfma32(pkk[e], wphi[0], kb[e], '0')); A(mfma32(pkk[e], wphi[0]+4, kb[e]+4))
    for e in range(2):
        for i in range(8): A(f'v_cvt_pk_bf16_f32 v{vb[e]+i}, v{acc[1][e]+2*i}, v{acc[1][e]+2*i+1}')
    cb = V.get(2); ebuf = V.get(14, 2); tmp = V.get(4)
    ph = [kb[0], kb[1]]
    tr = [acc[0][0], acc[0][1]]
    kvacc = [acc[1][0], acc[1][1]]
    tb = V.get(8, 4)
    for e in range(2):
        A(f'v_mul_f32 v{cb}, {fl(LOG2E)}, v{st_r[e]}')
        softmax_pair(A, pkk[e], cb, ebuf, ph[0], ph[1], tmp, scale=st_r[e])
        for sg in range(2):
            A(mfma32(tr[sg], ph[sg], idf, '0')); A(mfma32(tr[sg], ph[sg]+4, idf+4))
        for sg in range(2):
            for i in range(8): A(f'v_cvt_pk_bf16_f32 v{tb+i}, v{tr[sg]+2*i}, v{tr[sg]+2*i+1}')
            A(mfma32(kvacc[sg], tb, vb[e], '0' if e == 0 else None)); A(mfma32(kvacc[sg], tb+4, vb[e]+4))
    A(f's_lshl_b32 s{sT}, s{sH0}, 5\n s_lshl_b32 s{sT2}, s{sRG}, 1\n s_add_u32 s{sT}, s{sT}, s{sT2}\n s_add_u32 s{sT}, s{sT}, s{sTP}')
    A(f's_lshl_b32 s{sT}, s{sT}, 12\n s_add_u32 s{sT}, s{sT}, {KVP_OFF}')
    A(f'v_lshlrev_b32 v{t}, 4, v{vl}')
    for sg in range(2):
        o = ph[sg]
        for i in range(8): A(f'v_cvt_pk_bf16_f32 v{o+i}, v{kvacc[sg]+2*i}, v{kvacc[sg]+2*i+1}')
        for i in range(2): A(f'buffer_store_dwordx4 v[{o+4*i}:{o+4*i+3}], v{t}, s[12:15], s{sT} offen offset:{(2*sg+i)*1024}')
    stamp_end(A, 0, 12)
    A('s_endpgm')

    A.label(f'{name}_qw', False)
    A(f's_and_b32 s{sH0}, s{sCG}, 3\n s_lshl_b32 s{sH0}, s{sH0}, 2\n s_lshl_b32 s{sT}, s{sJ}, 1\n s_add_u32 s{sH0}, s{sH0}, s{sT}')
    A(f's_mul_i32 s{sH1}, s{sH0}, 1568\n s_add_u32 s60, s{sH1}, 1568')
    def hook():
        load_wphi(0, sH1); load_wphi(1, 60)
    mainloop(False, hook)
    stamp_mid(A, 1)
    finish_stats()
    V.restore(vtop)
    for e in range(2): corr_xfrag(A, cx[e], st_m[e], None, t)
    for f in range(2): corr_wfrag(A, cw[f], cs[f], t, 's[54:55]')
    for f in range(2):
        for e in range(2): A(mfma32(acc[f][e], cw[f], cx[e]))
    A(f's_cmp_ge_u32 s{sCG}, 12')
    A.branch('s_cbranch_scc1', f'{name}_w1')
    qb = [V.get(8, 4) for i in range(2)]; pq = [V.get(16) for i in range(2)]; rr = V.get(2)
    vSt = V.get(2); vo = V.get()
    pack_wphi(0); pack_wphi(1)
    A(f'v_lshlrev_b32 v{vo}, 4, v{vl}')
    A(f's_lshl_b32 s{sT}, s{sRG}, 2\n s_add_u32 s{sT}, s{sT}, s{sTile0}\n s_lshl_b32 s{sT}, s{sT}, 8\n s_add_u32 s{sT}, s{sT}, {ST1_OFF}')
    A(f'v_mov_b32 v{vSt}, v{st_m[0]}\n v_mov_b32 v{vSt+1}, v{st_r[0]}\n v_lshlrev_b32 v{t}, 3, v{vT31}')
    A(f'buffer_store_dwordx2 v[{vSt}:{vSt+1}], v{t}, s[12:15], s{sT} offen')
    u = 0
    for f in range(2):
        for e in range(2):
            q = qb[u & 1]; p = pq[u & 1]; u += 1
            for i in range(8): A(f'v_cvt_pk_bf16_f32 v{q+i}, v{acc[f][e]+2*i}, v{acc[f][e]+2*i+1}')
            A(mfma32(p, wphi[f], q, '0')); A(mfma32(p, wphi[f]+4, q+4))
            A(f's_add_u32 s{sT}, s{sH0}, {f}\n s_lshl_b32 s{sT}, s{sT}, 6\n s_lshl_b32 s{sT2}, s{sRG}, 2\n s_add_u32 s{sT}, s{sT}, s{sT2}')
            A(f's_add_u32 s{sT}, s{sT}, s{[sTile0, sTile1][e]}\n s_lshl_b32 s{sT}, s{sT}, 11\n s_add_u32 s{sT}, s{sT}, {PQ_OFF}')
            A(f'v_mov_b32 v{rr}, v{st_r[e]}')
            for i in range(0, 16, 2): A(pk('v_pk_mul_f32', p+i, p+i, rr, selhi=[1,0]))
            o = acc[f][e]
            for i in range(8): A(f'v_cvt_pk_bf16_f32 v{o+i}, v{p+2*i}, v{p+2*i+1}')
            for i in range(2): A(f'buffer_store_dwordx4 v[{o+4*i}:{o+4*i+3}], v{vo}, s[12:15], s{sT} offen offset:{i*1024}')
    stamp_end(A, 0, 12)
    A('s_endpgm')
    A.label(f'{name}_w1', False)
    V.restore(vtop)
    kk = [V.get(2) for e in range(2)]; inv = [V.get(2) for e in range(2)]; tt = V.get(16); ob = [V.get(8, 4) for i in range(2)]
    vo = [V.get() for e in range(2)]
    sD = 61
    A(f's_and_b32 s{sT}, s{sCG}, 3\n s_lshr_b32 s{sD}, s{sT}, 1\n s_add_u32 s{sD}, s{sD}, 1\n s_sub_u32 s{sT2}, 0, s{sD}')
    A(f's_bitcmp1_b32 s{sT}, 0\n s_cselect_b32 s{sD}, s{sT2}, s{sD}')
    A(f's_mul_i32 s{sH1}, s{sT}, 7\n s_lshl_b32 s{sT}, s{sJ}, 2\n s_add_u32 s{sH1}, s{sH1}, s{sT}\n s_lshl_b32 s{sH1}, s{sH1}, 10')
    if HS_OFF: A(f's_add_u32 s{sH1}, s{sH1}, {HS_OFF}')
    for e in range(2):
        A(f'v_mul_f32 v{t}, v{st_r[e]}, v{st_r[e]}\n v_mov_b32 v{t+1}, {fl(1e-5)}\n v_fma_f32 v{t}, v{t}, v{st_var[e]}, v{t+1}')
        A(f'v_rsq_f32 v{t}, v{t}\n v_mul_f32 v{t}, v{t}, v{st_r[e]}')
        A(f'v_rcp_f32 v{inv[e]}, v{t}\n v_mul_f32 v{kk[e]}, {fl(GELU_C1)}, v{t}\n v_mul_f32 v{t+1}, v{t}, v{t}')
        A(f'v_mul_f32 v{t+1}, {fl(0.044715)}, v{t+1}\n v_mul_f32 v{kk[e]+1}, v{t+1}, v{kk[e]}')
        A(f's_lshl_b32 s{sT}, s{sRG}, 2\n s_add_u32 s{sT}, s{sT}, s{[sTile0, sTile1][e]}\n s_lshl_b32 s{sT}, s{sT}, 5\n s_add_u32 s{sT}, s{sT}, s{sD}')
        A(f'v_add_u32 v{t}, s{sT}, v{vT31}')
        A(f'v_cmp_lt_u32 vcc, 2047, v{t}')
        A(f'v_and_b32 v{t}, 2047, v{t}\n v_lshrrev_b32 v{t+1}, 5, v{t}\n v_mul_u32_u24 v{t+1}, {28*1024}, v{t+1}')
        A(f'v_and_b32 v{t}, 31, v{t}\n v_lshl_add_u32 v{t}, v{vH}, 5, v{t}\n v_lshl_add_u32 v{vo[e]}, v{t}, 4, v{t+1}')
        lab = f'{name}_nz{e}'
        A.branch('s_cbranch_vccz', lab)
        A('s_mov_b64 exec, vcc')
        for f in range(2):
            for r in range(16): A(f'v_mov_b32 v{acc[f][e]+r}, 0')
        A('s_mov_b64 exec, -1')
        A.label(lab, True)
    u = 0
    for f, half in ((0, 0), (0, 1), (1, 0), (1, 1)):
        if (f, half) == (1, 1):
            A(f's_cmp_eq_u32 s{sJ}, 1')
            A.branch('s_cbranch_scc1', f'{name}_w1end')
        for e in range(2):
            o = ob[u & 1] ; u += 1
            gelu_pack(A, acc[f][e] + 8*half, 8, kk[e], inv[e], tt + 8*e, o)
            A(f'buffer_store_dwordx4 v[{o}:{o+3}], v{vo[e]}, s[12:15], s{sH1} offen offset:{(2*f+half)*1024}')
    A.st.vm = []; A.saved[f'{name}_w1end'][0].vm = []
    A.label(f'{name}_w1end', True)
    stamp_end(A, 0, 12)
    A.raw(f'{name}_done:')
    A('s_endpgm')
    A.raw(f'{name}_end:')
    return dict(name=name, grid=256, lds=K1_LDS, vgpr=A.maxv+1, sgpr=A.maxs+1)

def w128_dma_off(A, d, vl, t, s_col):
    A(f'v_lshrrev_b32 v{t}, 3, v{vl}\n v_mul_u32_u24 v{t}, 896, v{t}')
    A(f'v_bfe_u32 v{t+1}, v{vl}, 4, 1\n v_lshlrev_b32 v{t+1}, 2, v{t+1}\n v_and_b32 v{t+2}, 7, v{vl}\n v_xor_b32 v{t+1}, v{t+1}, v{t+2}')
    A(f'v_lshl_add_u32 v{t}, v{t+1}, 4, v{t}\n v_add_u32 v{d}, s{s_col}, v{t}')

def w128_read_addr(A, d, vl, t):
    A(f'v_bfe_u32 v{t}, v{vl}, 2, 2\n v_lshrrev_b32 v{t+1}, 5, v{vl}\n v_lshl_add_u32 v{t}, v{t+1}, 2, v{t}\n v_lshlrev_b32 v{t}, 7, v{t}')
    A(f'v_bfe_u32 v{t+1}, v{vl}, 3, 1\n v_lshl_add_u32 v{t}, v{t+1}, 6, v{t}')
    A(f'v_bfe_u32 v{t+1}, v{vl}, 4, 1\n v_lshl_add_u32 v{t}, v{t+1}, 5, v{t}')
    A(f'v_and_b32 v{t+1}, 3, v{vl}\n v_lshl_add_u32 v{d}, v{t+1}, 3, v{t}')

def unpack_x_tile(A, raw, dst):
    for j in range(2):
        A(f'v_permlane32_swap_b32 v{raw+4*j}, v{raw+4*j+2}\n v_permlane32_swap_b32 v{raw+4*j+1}, v{raw+4*j+3}')
    unpack16(A, raw, dst)
def unpack16(A, raw, dst, n=8):
    for i in range(n):
        A(f'v_lshlrev_b32 v{dst+2*i}, 16, v{raw+i}\n v_and_b32 v{dst+2*i+1}, 0xffff0000, v{raw+i}')

K2_LDS = 98304
def k2(A, name):
    A.new_kernel(name)
    stamp_begin(A)
    A('s_load_dwordx2 s[4:5], s[0:1], 0\n s_load_dwordx2 s[8:9], s[0:1], 48\n s_load_dwordx2 s[12:13], s[0:1], 88')
    A('s_cmp_ge_u32 s2, 240')
    A.branch('s_cbranch_scc1', f'{name}_done')
    V = Alloc(1)
    vl = V.get(); t = V.get(8, 4); vpf = V.get(2)
    code_prefetch(A, None, f'{name}_end', t, vpf, 24)
    sW, sX, sLoc, sT, sT2, sRG, sCG, sA, sB, sTile = 3, *range(30, 39)
    lane_wave(A, vl, sW, t)
    srd(A, 4, 2048*896); srd(A, 8, 448*896); srd(A, 12, WS_SIZE)
    A(f's_and_b32 s{sX}, s2, 7\n s_lshr_b32 s{sLoc}, s2, 3')
    vL16 = V.get(); vT31 = V.get(); vH = V.get()
    A(f'v_lshlrev_b32 v{vL16}, 4, v{vl}\n v_and_b32 v{vT31}, 31, v{vl}\n v_lshrrev_b32 v{vH}, 5, v{vl}')
    vtop = V.snap()
    A(f's_cmp_ge_u32 s{sLoc}, 14')
    A.branch('s_cbranch_scc1', f'{name}_a')
    A(f's_and_b32 s{sT}, s{sLoc}, 1\n s_lshl_b32 s{sRG}, s{sX}, 1\n s_add_u32 s{sRG}, s{sRG}, s{sT}\n s_lshr_b32 s{sCG}, s{sLoc}, 1')
    A(f's_lshl_b32 s{sTile}, s{sRG}, 2\n s_add_u32 s{sTile}, s{sTile}, s{sW}')
    A(f's_lshl_b32 s{sT}, s{sCG}, 7')
    vWoff = V.get(); w128_dma_off(A, vWoff, vl, t, sT)
    A(f's_mul_i32 s{sA}, s{sTile}, {28*1024}')
    if HS_OFF: A(f's_add_u32 s{sA}, s{sA}, {HS_OFF}')
    A(f's_mul_i32 s{sB}, s{sW}, {16*896}\n s_lshl_b32 s{sT2}, s{sW}, 11')
    fa = V.get(112)
    for c in range(7):
        for i in range(2):
            A(f's_add_u32 m0, s{sT2}, {c*8192 + i*1024}')
            A(f's_add_u32 s{sT}, s{sB}, {(c*64 + i*8)*896}')
            A(f'buffer_load_dwordx4 v{vWoff}, s[8:11], s{sT} offen lds', tag=('c', c))
        for s in range(4):
            A(f'buffer_load_dwordx4 v[{fa+16*c+4*s}:{fa+16*c+4*s+3}], v{vL16}, s[12:15], s{sA} offen offset:{s*1024}')
        if c < 6: A(f's_add_u32 s{sA}, s{sA}, 4096')
    xr = V.get(16); st = V.get(2)
    A(f'v_mul_u32_u24 v{t}, 896, v{vT31}\n v_lshl_add_u32 v{t}, v{vH}, 4, v{t}')
    A(f's_mul_i32 s{sT}, s{sTile}, {32*896}\n s_lshl_b32 s{sA}, s{sCG}, 7\n s_add_u32 s{sT}, s{sT}, s{sA}')
    for i in range(4): A(f'buffer_load_dwordx4 v[{xr+4*i}:{xr+4*i+3}], v{t}, s[4:7], s{sT} offen offset:{32*i}')
    A(f's_lshl_b32 s{sT}, s{sTile}, 8\n s_add_u32 s{sT}, s{sT}, {ST1_OFF}\n v_lshlrev_b32 v{t+1}, 3, v{vT31}')
    A(f'buffer_load_dwordx2 v[{st}:{st+1}], v{t+1}, s[12:15], s{sT} offen')
    vWa = [V.get(), V.get()]
    w128_read_addr(A, vWa[0], vl, t+2); A(f'v_xor_b32 v{vWa[1]}, 64, v{vWa[0]}')
    acc = [V.get(16) for f in range(2)]
    fw = [[V.get(4) for f in range(2)] for b in range(2)]
    def reads(n):
        for f in range(2):
            for sec in range(2):
                A(f'ds_read_b64_tr_b16 v[{fw[n&1][f]+2*sec}:{fw[n&1][f]+2*sec+1}], v{vWa[f]} offset:{n*2048 + sec*1024}')
    A.wait_tag(('c', 0)); A.barrier(); reads(0)
    for n in range(28):
        if n + 1 < 28:
            if (n + 1) % 4 == 0:
                A.wait_tag(('c', (n+1)//4)); A.barrier()
            reads(n + 1)
        for f in range(2): A(mfma32(acc[f], fw[n&1][f], fa + 4*n, '0' if n == 0 else None))
    stamp_mid(A, 1)
    xf = fa; ob = fa + 32; sq = fa + 48
    for f in range(2): unpack_x_tile(A, xr + 8*f, xf + 16*f)
    A(f'v_mul_f32 v{st}, v{st}, v{st+1}')
    for i in range(0, 32, 2):
        A(pk('v_pk_fma_f32', xf+i, xf+i, st, st, sel=[0,1,0], selhi=[1,1,0], neg=[0,0,1]))
    A(f's_mul_i32 s{sT}, s{sTile}, {28*1024}\n s_lshl_b32 s{sA}, s{sCG}, 12\n s_add_u32 s{sT}, s{sT}, s{sA}\n s_add_u32 s{sT}, s{sT}, {X1_OFF}')
    for f in range(2):
        for i in range(0, 16, 2): A(pk('v_pk_add_f32', xf+16*f+i, xf+16*f+i, acc[f]+i))
        for i in range(8): A(f'v_cvt_pk_bf16_f32 v{ob+8*f+i}, v{xf+16*f+2*i}, v{xf+16*f+2*i+1}')
        for i in range(2): A(f'buffer_store_dwordx4 v[{ob+8*f+4*i}:{ob+8*f+4*i+3}], v{vL16}, s[12:15], s{sT} offen offset:{(2*f+i)*1024}')
    A(pk('v_pk_add_f32', sq, xf, xf+2)); A(pk('v_pk_mul_f32', sq+2, xf, xf)); A(pk('v_pk_fma_f32', sq+2, xf+2, xf+2, sq+2))
    for i in range(4, 32, 2):
        A(pk('v_pk_add_f32', sq, sq, xf+i)); A(pk('v_pk_fma_f32', sq+2, xf+i, xf+i, sq+2))
    A(f'v_add_f32 v{sq}, v{sq}, v{sq+1}\n v_add_f32 v{sq+1}, v{sq+2}, v{sq+3}')
    A(f's_mul_i32 s{sT}, s{sTile}, 7\n s_add_u32 s{sT}, s{sT}, s{sCG}\n s_lshl_b32 s{sT}, s{sT}, 9\n s_add_u32 s{sT}, s{sT}, {ST2_OFF}')
    A(f'v_lshlrev_b32 v{t}, 3, v{vl}')
    A(f'buffer_store_dwordx2 v[{sq}:{sq+1}], v{t}, s[12:15], s{sT} offen')
    stamp_end(A, 1, 12)
    A('s_endpgm')
    A.label(f'{name}_a', False)
    V.restore(vtop)
    sHd, sTG = sRG, sCG
    A(f's_sub_u32 s{sLoc}, s{sLoc}, 14\n s_and_b32 s{sT}, s{sLoc}, 1\n s_lshl_b32 s{sHd}, s{sX}, 1\n s_add_u32 s{sHd}, s{sHd}, s{sT}\n s_lshr_b32 s{sTG}, s{sLoc}, 1')
    A(f's_lshl_b32 s{sTile}, s{sTG}, 3\n s_lshl_b32 s{sT}, s{sW}, 1\n s_add_u32 s{sTile}, s{sTile}, s{sT}')
    pqr = V.get(16)
    A(f's_lshl_b32 s{sT}, s{sHd}, 6\n s_add_u32 s{sT}, s{sT}, s{sTile}\n s_lshl_b32 s{sT}, s{sT}, 11\n s_add_u32 s{sT}, s{sT}, {PQ_OFF}')
    for i in range(4): A(f'buffer_load_dwordx4 v[{pqr+4*i}:{pqr+4*i+3}], v{vL16}, s[12:15], s{sT} offen offset:{i*1024}')
    kp = V.get(128)
    A(f's_lshl_b32 s{sA}, s{sHd}, 17\n s_lshl_b32 s{sT}, s{sW}, 10\n s_add_u32 s{sA}, s{sA}, s{sT}\n s_add_u32 s{sA}, s{sA}, {KVP_OFF}')
    for p in range(32):
        A(f'buffer_load_dwordx4 v[{kp+4*p}:{kp+4*p+3}], v{vL16}, s[12:15], s{sA} offen')
        if p < 31: A(f's_add_u32 s{sA}, s{sA}, 4096')
    pf = V.get(16); cb = V.get(2); ebuf = V.get(14, 2); tmp = V.get(4)
    ph = [[V.get(8, 4) for sg in range(2)] for e in range(2)]
    for e in range(2):
        unpack16(A, pqr + 8*e, pf, 7)
        A(f'v_mov_b32 v{cb}, {fl(LOG2E)}')
        softmax_pair(A, pf, cb, ebuf, ph[e][0], ph[e][1], tmp)
    ka = pf
    A(f's_mov_b32 s{sA}, 0x3f80\n s_mov_b32 s{sB}, 0x3f800000')
    for p in range(32):
        for i in range(4):
            c0 = '0' if p == 0 else f'v{ka+2*i}'; c1 = '0' if p == 0 else f'v{ka+2*i+1}'
            A(f'v_dot2_f32_bf16 v{ka+2*i}, v{kp+4*p+i}, s{sA}, {c0}\n v_dot2_f32_bf16 v{ka+2*i+1}, v{kp+4*p+i}, s{sB}, {c1}')
    stamp_mid(A, 1)
    for i in range(4): A(f'v_cvt_pk_bf16_f32 v{ka+8+i}, v{ka+2*i}, v{ka+2*i+1}')
    A(f'v_lshlrev_b32 v{t}, 4, v0')
    A(f'ds_write_b128 v{t}, v[{ka+8}:{ka+11}]')
    A.wait(lg=0); A.barrier()
    kf = kp
    for i in range(4): A(f'ds_read_b128 v[{kf+4*i}:{kf+4*i+3}], v{vL16} offset:{i*1024}')
    num = [kp + 16, kp + 32]
    for e in range(2):
        for i in range(4): A(mfma32(num[e], kf + 4*i, ph[e][i >> 1] + 4*(i & 1), '0' if i == 0 else None))
    A('s_mov_b32 s40, -1\n s_mov_b32 s41, 0')
    A(f's_lshl_b32 s{sT}, s{sTile}, 4\n s_add_u32 s{sT}, s{sT}, s{sHd}\n s_lshl_b32 s{sT}, s{sT}, 11\n s_add_u32 s{sT}, s{sT}, {O_OFF}')
    for e in range(2):
        n = num[e]; o = kp + 48 + 8*e
        A(f'v_mov_b32 v{cb}, v{n+12}\n v_mov_b32 v{cb+1}, v{n+12}')
        A(f'v_permlane32_swap_b32 v{cb+1}, v{cb}')
        A(f'v_add_f32 v{cb}, {fl(1e-6)}, v{cb}\n v_rcp_f32 v{cb}, v{cb}')
        for i in range(0, 16, 2): A(pk('v_pk_mul_f32', n+i, n+i, cb, selhi=[1,0]))
        for i in range(8): A(f'v_cvt_pk_bf16_f32 v{o+i}, v{n+2*i}, v{n+2*i+1}')
        A(f'v_cndmask_b32 v{o+6}, 0, v{o+6}, s[40:41]\n v_cndmask_b32 v{o+7}, 0, v{o+7}, s[40:41]')
        if e: A(f's_add_u32 s{sT}, s{sT}, {32*1024}')
        for i in range(2): A(f'buffer_store_dwordx4 v[{o+4*i}:{o+4*i+3}], v{vL16}, s[12:15], s{sT} offen offset:{i*1024}')
    stamp_end(A, 1, 12)
    A.raw(f'{name}_done:')
    A('s_endpgm')
    A.raw(f'{name}_end:')
    return dict(name=name, grid=240, lds=K2_LDS, vgpr=A.maxv+1, sgpr=A.maxs+1)

K3_LDS = 448*224
def k3(A, name, kidx=2):
    A.new_kernel(name)
    stamp_begin(A)
    A('s_load_dwordx2 s[8:9], s[0:1], 56\n s_load_dwordx2 s[12:13], s[0:1], 88')
    A('s_cmp_ge_u32 s2, 256')
    A.branch('s_cbranch_scc1', f'{name}_done')
    V = Alloc(1)
    vl = V.get(); t = V.get(8, 4); vpf = V.get(2)
    code_prefetch(A, None, f'{name}_end', t, vpf, 24)
    sW, sT, sT2, sRG, sCG, sA, sB, sTile, sPitch, sOff, sM = 3, *range(30, 40)
    lane_wave(A, vl, sW, t)
    srd(A, 8, 448*3584); srd(A, 12, WS_SIZE)
    A(f's_and_b32 s{sRG}, s2, 7\n s_lshl_b32 s{sRG}, s{sRG}, 1\n s_bfe_u32 s{sT}, s2, 0x10003\n s_add_u32 s{sRG}, s{sRG}, s{sT}\n s_lshr_b32 s{sCG}, s2, 4')
    A(f's_lshl_b32 s{sTile}, s{sRG}, 2\n s_add_u32 s{sTile}, s{sTile}, s{sW}')
    A(f's_mov_b32 s{sPitch}, 3584\n s_mul_i32 s{sOff}, s{sCG}, 224')
    vL16 = V.get(); vH = V.get(); vWoff = V.get()
    A(f'v_lshlrev_b32 v{vL16}, 4, v{vl}\n v_lshrrev_b32 v{vH}, 5, v{vl}')
    w224_dma_off(A, vWoff, vl, t, sPitch, sOff, sOff)
    A(f's_mul_i32 s{sA}, s{sTile}, {28*1024}\n s_add_u32 s{sA}, s{sA}, {X1_OFF}')
    A(f's_mul_i32 s{sB}, s{sW}, {16*3584}\n s_mul_i32 s{sM}, s{sW}, {4*896}')
    for c in range(7):
        A(EXEC56)
        for i in range(4):
            A(f's_add_u32 m0, s{sM}, {c*14336 + i*896}')
            A(f's_add_u32 s{sT}, s{sB}, {(c*64 + [0,2,8,10][i])*3584}')
            if 'nodma' not in Opt.x: A(f'buffer_load_dwordx4 v{vWoff}, s[8:11], s{sT} offen lds', tag=('c', c))
        A(EXEC64)
        for s in range(4):
            if 'noact' not in Opt.x: A(f'buffer_load_dwordx4 a[{16*c+4*s}:{16*c+4*s+3}], v{vL16}, s[12:15], s{sA} offen offset:{s*1024}')
        if c < 6: A(f's_add_u32 s{sA}, s{sA}, 4096')
    stp = V.get(14, 2)
    A(f's_mul_i32 s{sT}, s{sTile}, {7*512}\n s_add_u32 s{sT}, s{sT}, {ST2_OFF}\n v_lshlrev_b32 v{t}, 3, v{vl}')
    for g in range(7): A(f'buffer_load_dwordx2 v[{stp+2*g}:{stp+2*g+1}], v{t}, s[12:15], s{sT} offen offset:{g*512}')
    vWa = [V.get() for f in range(4)]; vWb = [V.get() for f in range(4)]
    A(f'v_bfe_u32 v{t+1}, v{vl}, 2, 2\n v_lshl_add_u32 v{t+1}, v{t+1}, 1, v{vH}\n v_mul_u32_u24 v{t+1}, 224, v{t+1}')
    A(f'v_bfe_u32 v{t+2}, v{vl}, 4, 1\n v_lshlrev_b32 v{t+2}, 5, v{t+2}\n v_and_b32 v{t+3}, 3, v{vl}\n v_lshl_add_u32 v{t+2}, v{t+3}, 3, v{t+2}')
    for f in range(4):
        A(f'v_add_u32 v{t+3}, {64*f}, v{t+2}')
        if f == 3: A(f'v_min_u32 v{t+3}, 216, v{t+3}')
        A(f'v_add_u32 v{vWa[f]}, v{t+3}, v{t+1}\n v_add_u32 v{vWb[f]}, {16*3584}, v{vWa[f]}')
    vCa = V.get(); vCb = V.get()
    A(f's_lshl_b32 s{sT}, s{sW}, 6\n v_add_u32 v{t+3}, s{sT}, v{t+2}\n v_min_u32 v{t+3}, 216, v{t+3}\n v_add_u32 v{vCa}, v{t+3}, v{t+1}\n v_add_u32 v{vCb}, {16*3584}, v{vCa}')
    vOnes = V.get(4); ones_mask_frag(A, vOnes, vl, t+2)
    acc = [V.get(16) for f in range(4)]
    cs = V.get(4)
    fw = [[V.get(4) for f in range(5)] for b in range(2)]
    def reads(n):
        if 'noreads' in Opt.x: return
        for f in range(5):
            ba, bb = (vWa[f], vWb[f]) if f < 4 else (vCa, vCb)
            base, o = (ba, n*3584) if n < 16 else (bb, (n-16)*3584)
            for sec in range(2):
                A(f'ds_read_b64_tr_b16 v[{fw[n&1][f]+2*sec}:{fw[n&1][f]+2*sec+1}], v{base} offset:{o + sec*1792}')
    if 'waitall' in Opt.x: A.wait(vm=0)
    A.wait(lg=0); A.wait_tag(('c', 0)); A.barrier(); stamp_mid(A, 2); reads(0)
    for n in range(28):
        if n + 1 < 28:
            if (n + 1) % 4 == 0:
                A.wait_tag(('c', (n+1)//4)); A.barrier()
            reads(n + 1)
        z = '0' if n == 0 else None
        if 'nomfma' in Opt.x:
            A.wait(lg=0); continue
        for f in range(4): A(mfma32(acc[f], fw[n&1][f], ar(4*n, 4), z))
        A(mfma16(cs, vOnes, fw[n&1][4], z))
    if 'nomfma' in Opt.x: A.wait(vm=0)
    stamp_mid(A, 1)
    for g in range(1, 7): A(pk('v_pk_add_f32', stp, stp, stp+2*g))
    xhalf(A, 'v_add_f32', stp, t); xhalf(A, 'v_add_f32', stp+1, t+1)
    vm, vr_ = stp+2, stp+3
    kk = stp+4; inv = stp+6
    A(f's_mov_b32 s{sT}, {fl(1.0/448)}')
    A(f'v_mul_f32 v{vm}, s{sT}, v{stp}\n v_mul_f32 v{t}, s{sT}, v{stp+1}\n v_fma_f32 v{t}, -v{vm}, v{vm}, v{t}\n v_max_f32 v{t}, 0, v{t}')
    A(f'v_add_f32 v{t}, {fl(1e-5)}, v{t}\n v_rsq_f32 v{vr_}, v{t}\n v_mul_f32 v{inv}, v{t}, v{vr_}')
    A(f'v_mul_f32 v{kk}, {fl(GELU_C1)}, v{vr_}\n v_mul_f32 v{t}, v{vr_}, v{vr_}\n v_mul_f32 v{t}, {fl(0.044715)}, v{t}\n v_mul_f32 v{kk+1}, v{t}, v{kk}')
    fa = V.get(80)
    cx = fa; cw = fa + 4
    corr_xfrag(A, cx, vm, None, t)
    A('s_mov_b32 s40, -1\n s_mov_b32 s41, 0')
    corr_wfrag(A, cw, cs, t, 's[40:41]')
    A.wait(lg=0); A.barrier()
    A(f'v_lshlrev_b32 v{t}, 3, v0\n ds_write_b64 v{t}, v[{cw}:{cw+1}]')
    A(f'v_lshlrev_b32 v{t+1}, 3, v{vl}')
    cws = [fa + 8 + 4*f for f in range(4)]
    for f in range(4): A(f'v_mov_b32 v{cws[f]+2}, 0\n v_mov_b32 v{cws[f]+3}, 0')
    A.wait(lg=0); A.barrier()
    for f in range(4): A(f'ds_read_b64 v[{cws[f]}:{cws[f]+1}], v{t+1} offset:{f*512}')
    for f in range(4): A(mfma32(acc[f], cws[f], cx))
    A(f's_mul_i32 s{sT}, s{sTile}, {112*1024}\n s_mul_i32 s{sT2}, s{sCG}, {7*1024}\n s_add_u32 s{sT}, s{sT}, s{sT2}\n s_add_u32 s{sT}, s{sT}, {H3_OFF}')
    A(f's_add_u32 s{sT2}, s{sT}, 4096')
    tt = fa + 32; ob = fa + 48
    for f in range(4):
        n = 16 if f < 3 else 8
        o = ob + 8*f
        gelu_pack(A, acc[f], n, kk, inv, tt, o)
        for i in range(n // 8):
            ks = 2*f + i
            A(f'buffer_store_dwordx4 v[{o+4*i}:{o+4*i+3}], v{vL16}, s[12:15], s{sT if ks < 4 else sT2} offen offset:{(ks % 4)*1024}')
    stamp_end(A, kidx, 12)
    A.raw(f'{name}_done:')
    A('s_endpgm')
    A.raw(f'{name}_end:')
    return dict(name=name, grid=256, lds=K3_LDS, vgpr=A.maxv+1, sgpr=A.maxs+1, agpr=A.maxa+1)

K4_SLOTS = 8
K4_LDS = K4_SLOTS * 16384
def k4(A, name):
    A.new_kernel(name)
    stamp_begin(A)
    A('s_load_dwordx2 s[4:5], s[0:1], 0\n s_load_dwordx2 s[8:9], s[0:1], 64\n s_load_dwordx2 s[16:17], s[0:1], 24')
    A('s_load_dwordx2 s[12:13], s[0:1], 88\n s_load_dwordx2 s[20:21], s[0:1], 72')
    A('s_cmp_ge_u32 s2, 224')
    A.branch('s_cbranch_scc1', f'{name}_done')
    V = Alloc(1)
    vl = V.get(); t = V.get(8, 4); vpf = V.get(2)
    code_prefetch(A, None, f'{name}_end', t, vpf, 24)
    sW, sT, sT2, sTG, sCG, sA, sB, sTile, sMa, sMw, sO, sB2, sTT, sF = 3, *range(30, 43)
    lane_wave(A, vl, sW, t)
    srd(A, 4, 2048*896); srd(A, 8, 1792*896); srd(A, 16, 448*896); srd(A, 12, WS_SIZE); srd(A, 20, 2048*896)
    A(f's_and_b32 s{sTG}, s2, 7\n s_lshl_b32 s{sTG}, s{sTG}, 2\n s_bfe_u32 s{sT}, s2, 0x20003\n s_add_u32 s{sTG}, s{sTG}, s{sT}\n s_lshr_b32 s{sCG}, s2, 5')
    A(f's_and_b32 s{sTT}, s{sW}, 1\n s_lshr_b32 s{sF}, s{sW}, 1')
    A(f's_lshl_b32 s{sTile}, s{sTG}, 1\n s_add_u32 s{sTile}, s{sTile}, s{sTT}')
    vL16 = V.get(); vT31 = V.get(); vH = V.get(); vWoff = V.get()
    A(f'v_lshlrev_b32 v{vL16}, 4, v{vl}\n v_and_b32 v{vT31}, 31, v{vl}\n v_lshrrev_b32 v{vH}, 5, v{vl}')
    A(f's_lshl_b32 s{sT}, s{sCG}, 7')
    w128_dma_off(A, vWoff, vl, t, sT)
    A(f's_mul_i32 s{sA}, s{sTile}, {112*1024}\n s_lshl_b32 s{sT}, s{sF}, 11\n s_add_u32 s{sA}, s{sA}, s{sT}\n s_add_u32 s{sA}, s{sA}, {H3_OFF}')
    A(f's_lshl_b32 s{sO}, s{sTile}, 15\n s_add_u32 s{sO}, s{sO}, s{sT}\n s_add_u32 s{sO}, s{sO}, {O_OFF}')
    A(f's_lshl_b32 s{sMa}, s{sTT}, 12\n s_add_u32 s{sMa}, s{sMa}, s{sT}')
    A(f's_mul_i32 s{sB}, s{sW}, {16*896}\n s_lshl_b32 s{sMw}, s{sW}, 11\n s_add_u32 s{sMw}, s{sMw}, 8192')
    A(f's_mul_i32 s{sB2}, s{sF}, {28*896}\n s_mul_i32 s{sT}, s{sTT}, {16*896}\n s_add_u32 s{sB2}, s{sB2}, s{sT}')
    NCH = 36
    def issue(c):
        slot = (c % K4_SLOTS) * 16384
        A(f's_add_u32 m0, s{sMa}, {slot}')
        if c < 28: A(f's_add_u32 s{sT}, s{sA}, {c*4096}')
        else: A(f's_add_u32 s{sT}, s{sO}, {(c-28)*4096}')
        A(f'buffer_load_dwordx4 v{vL16}, s[12:15], s{sT} offen lds', tag=('c', c))
        A(f'buffer_load_dwordx4 v{vL16}, s[12:15], s{sT} offen offset:1024 lds', tag=('c', c))
        for i in range(2):
            A(f's_add_u32 m0, s{sMw}, {slot + i*1024}')
            if c < 28:
                A(f's_add_u32 s{sT}, s{sB}, {(c*64 + 8*i)*896}')
                A(f'buffer_load_dwordx4 v{vWoff}, s[8:11], s{sT} offen lds', tag=('c', c))
            else:
                A(f's_add_u32 s{sT}, s{sB2}, {((c-28)*56 + 8*i)*896}')
                A(f'buffer_load_dwordx4 v{vWoff}, s[16:19], s{sT} offen lds', tag=('c', c))
    for c in range(K4_SLOTS): issue(c)
    xr = V.get(8, 4); x1r = V.get(8, 4); vXo = V.get()
    A(f'v_mul_u32_u24 v{vXo}, 896, v{vT31}\n v_lshl_add_u32 v{vXo}, v{vH}, 4, v{vXo}')
    sXo = 43
    A(f's_mul_i32 s{sXo}, s{sTile}, {32*896}\n s_lshl_b32 s{sT}, s{sCG}, 7\n s_add_u32 s{sXo}, s{sXo}, s{sT}\n s_lshl_b32 s{sT}, s{sF}, 6\n s_add_u32 s{sXo}, s{sXo}, s{sT}')
    for i in range(2): A(f'buffer_load_dwordx4 v[{xr+4*i}:{xr+4*i+3}], v{vXo}, s[4:7], s{sXo} offen offset:{32*i}')
    A(f's_mul_i32 s{sT}, s{sTile}, {28*1024}\n s_lshl_b32 s{sT2}, s{sCG}, 12\n s_add_u32 s{sT}, s{sT}, s{sT2}\n s_lshl_b32 s{sT2}, s{sF}, 11\n s_add_u32 s{sT}, s{sT}, s{sT2}\n s_add_u32 s{sT}, s{sT}, {X1_OFF}')
    for i in range(2): A(f'buffer_load_dwordx4 v[{x1r+4*i}:{x1r+4*i+3}], v{vL16}, s[12:15], s{sT} offen offset:{i*1024}')
    nb = (K4_SLOTS + 3) // 4
    vAa = [V.get() for i in range(nb)]; vWa = [V.get() for i in range(nb)]
    w128_read_addr(A, vWa[0], vl, t)
    A(f's_lshl_b32 s{sT}, s{sF}, 6\n v_xor_b32 v{vWa[0]}, s{sT}, v{vWa[0]}\n v_add_u32 v{vWa[0]}, 8192, v{vWa[0]}')
    A(f's_lshl_b32 s{sT}, s{sTT}, 12\n v_add_u32 v{vAa[0]}, s{sT}, v{vL16}')
    for i in range(1, nb): A(f'v_add_u32 v{vAa[i]}, {i*65536}, v{vAa[0]}\n v_add_u32 v{vWa[i]}, {i*65536}, v{vWa[0]}')
    acc = [V.get(16), V.get(16)]
    fa = [[V.get(4) for s in range(4)] for b in range(2)]
    fw = [[V.get(4) for s in range(4)] for b in range(2)]
    def reads(c):
        slot = c % K4_SLOTS; o = (slot % 4) * 16384; b = c & 1
        for s in range(4):
            A(f'ds_read_b128 v[{fa[b][s]}:{fa[b][s]+3}], v{vAa[slot//4]} offset:{o + s*1024}')
            for sec in range(2):
                A(f'ds_read_b64_tr_b16 v[{fw[b][s]+2*sec}:{fw[b][s]+2*sec+1}], v{vWa[slot//4]} offset:{o + s*2048 + sec*1024}')
    A.wait_tag(('c', 0)); A.barrier(); reads(0)
    for c in range(NCH):
        if c + 1 < NCH:
            A.wait(lg=0); A.wait_tag(('c', c+1)); A.barrier()
            reads(c + 1)
            if c + K4_SLOTS < NCH: issue(c + K4_SLOTS)
        a = acc[0] if c < 28 else acc[1]
        for s in range(4): A(mfma32(a, fw[c&1][s], fa[c&1][s], '0' if (s == 0 and c in (0, 28)) else None))
    stamp_mid(A, 1)
    xf = V.get(16); y = V.get(16); e = V.get(16); cc = V.get(2)
    unpack_x_tile(A, xr, xf); unpack16(A, x1r, y)
    A(f'v_mov_b32 v{cc}, {fl(-LOG2E)}\n v_mov_b32 v{cc+1}, 1.0')
    for i in range(0, 16, 2): A(pk('v_pk_add_f32', y+i, y+i, acc[0]+i))
    for i in range(0, 16, 2): A(pk('v_pk_mul_f32', e+i, y+i, cc, selhi=[1,0]))
    for i in range(16): A(f'v_exp_f32 v{e+i}, v{e+i}')
    for i in range(0, 16, 2): A(pk('v_pk_add_f32', e+i, e+i, cc, sel=[0,1], selhi=[1,1]))
    for i in range(16): A(f'v_rcp_f32 v{e+i}, v{e+i}')
    for i in range(0, 16, 2): A(pk('v_pk_mul_f32', y+i, y+i, e+i))
    for i in range(0, 16, 2): A(pk('v_pk_fma_f32', y+i, y+i, acc[1]+i, xf+i))
    for i in range(8): A(f'v_cvt_pk_bf16_f32 v{xr+i}, v{y+2*i}, v{y+2*i+1}')
    for j in range(2):
        A(f'v_permlane32_swap_b32 v{xr+4*j}, v{xr+4*j+2}\n v_permlane32_swap_b32 v{xr+4*j+1}, v{xr+4*j+3}')
        A(f'buffer_store_dwordx4 v[{xr+4*j}:{xr+4*j+3}], v{vXo}, s[20:23], s{sXo} offen offset:{32*j}')
    stamp_end(A, 3, 12)
    A.raw(f'{name}_done:')
    A('s_endpgm')
    A.raw(f'{name}_end:')
    return dict(name=name, grid=224, lds=K4_LDS, vgpr=A.maxv+1, sgpr=A.maxs+1)

def header():
    ref = open(f'cdna_kernels/{NAME}.s.ref').read().split('\n')
    return [l for l in ref if l.startswith(';') and '@launch' not in l and 'Override' not in l and 'grid=ceil' not in l]

def build(path, mk=None):
    A = Asm()
    ks = mk(A) if mk else [k1(A, 'hh1_kernel'), k2(A, 'hh2_kernel'), k3(A, 'hh3_kernel'), k4(A, 'hh4_kernel')]
    out = header()
    for k in ks: out.append(f"; @launch kernel={k['name']} grid=({k['grid']},1,1) block=(256,1,1) lds={k['lds']}")
    out.append('.amdgcn_target "amdgcn-amd-amdhsa--gfx950"\n.text')
    out.append(A.text())
    out.append('.section .rodata,"a"')
    for k in ks:
        vg = k['vgpr']; ao = (vg + 3) // 4 * 4
        if k.get('agpr'): vg = ao + k['agpr']
        out.append(f""".p2align 6
.amdhsa_kernel {k['name']}
  .amdhsa_next_free_vgpr {vg}
  .amdhsa_next_free_sgpr {k['sgpr']}
  .amdhsa_accum_offset {ao}
  .amdhsa_group_segment_fixed_size 0
  .amdhsa_kernarg_size 96
  .amdhsa_user_sgpr_count 2
  .amdhsa_user_sgpr_kernarg_segment_ptr 1
  .amdhsa_system_sgpr_workgroup_id_x 1
.end_amdhsa_kernel""")
    open(path, 'w').write('\n'.join(out) + '\n')
    for k in ks: print(k)
    print('nops', A.nops)

if __name__ == '__main__':
    Opt.stamps = False
    build(f'cdna_kernels/{NAME}.s')
    Opt.stamps = True
    build('dbg.s')
```

```python
import sys, struct
from emit import *
from gen import (NAME, HS_OFF, PQ_OFF, KVP_OFF, X1_OFF, ST2_OFF, O_OFF, H3_OFF, STAMP_OFF, WS_SIZE, LOG2E, fl, GELU_C1,
                 pk, xhalf, softmax_pair, gelu_pack, mfma32, mfma16, ones_mask_frag, w224_dma_off, EXEC56, EXEC64,
                 corr_xfrag, corr_wfrag, w128_dma_off, w128_read_addr, unpack_x_tile, unpack16, header)
ST1_OFF = 0x600000
FLAG_OFF = 0x610000
SC = 'sc1'
SPIN_MAX = 200000

class Opt:
    stamps = False
    x = ''

KN = NAME + '_kernel'
SRD_X, SRD_W, SRD_WS, SRD_P, SRD_OUT, SRD_W2 = 4, 8, 12, 16, 20, 24
sW, sXcd, sLoc, sNonce, sT, sT2, sT3, sSpin = 3, 28, 29, 30, 31, 32, 33, 34
S0 = 35
PTR = 60
def ptr(i): return PTR + 2*i
STAMP0 = 84
LDS_BYTES = 163840

class Gen:
    def __init__(self):
        self.A = Asm(); self.nst = 0; self.uid = 0
    def lab(self, s):
        self.uid += 1; return f'.L{s}{self.uid}'
    def stamp(self, i):
        if not Opt.stamps: return
        A = self.A
        A(f's_memrealtime s[{STAMP0}:{STAMP0+1}]')
        A(f'v_writelane_b32 v{self.vStamp}, s{STAMP0}, {i}')
    def stamp_flush(self):
        if not Opt.stamps: return
        A = self.A
        self.stamp(15)
        A(f's_lshl_b32 s{sT}, s2, 2\n s_add_u32 s{sT}, s{sT}, s{sW}\n s_lshl_b32 s{sT}, s{sT}, 6\n s_add_u32 s{sT}, s{sT}, {STAMP_OFF}')
        A(f'v_lshlrev_b32 v{self.t}, 2, v{self.vl}\n s_mov_b64 exec, 0xffff')
        A(f'buffer_store_dword v{self.vStamp}, v{self.t}, s[12:15], s{sT} offen')
    def set_srd(self, b, i, size):
        self.A(f's_mov_b32 s{b}, s{ptr(i)}\n s_mov_b32 s{b+1}, s{ptr(i)+1}\n s_mov_b32 s{b+2}, {hex(size)}\n s_mov_b32 s{b+3}, 0x00020000')

    def spin(self, load, cmp_, vdst):
        A = self.A
        A.wait(vm=0, lg=0)
        l = self.lab('spin'); d = self.lab('spun')
        A(f's_mov_b32 s{sSpin}, 0')
        A.raw(f'{l}:')
        A(load); A(f's_add_u32 s{sSpin}, s{sSpin}, 1'); A.wait(vm=0)
        A(cmp_)
        A(f's_cmp_ge_u32 s{sSpin}, {SPIN_MAX}')
        A(f's_cbranch_scc1 {d}')
        A(f's_cbranch_vccnz {l}')
        A.raw(f'{d}:')
        A('s_nop 1')
    def publish(self, stage, sIdx):
        A = self.A; t = self.t
        A.wait(vm=0); A.barrier()
        l = self.lab('pub')
        A(f's_cmp_lg_u32 s{sW}, 0'); A(f's_cbranch_scc1 {l}')
        A(f's_lshl_b32 s{sT}, s{sIdx}, 7\n s_add_u32 s{sT}, s{sT}, {FLAG_OFF + stage*0x8000}')
        A(f'v_mov_b32 v{t}, s{sNonce}\n v_mov_b32 v{t+1}, 0\n s_mov_b64 exec, 1')
        A(f'buffer_store_dword v{t}, v{t+1}, s[12:15], s{sT} offen {SC}')
        A('s_mov_b64 exec, -1')
        A.st.vm = []
        A.raw(f'{l}:')
    def poll(self, stage, nlanes, idx_code):
        A = self.A; t = self.t
        l = self.lab('poll')
        A.wait(lg=0)
        A(f's_cmp_lg_u32 s{sW}, 0'); A(f's_cbranch_scc1 {l}')
        sv = list(A.st.vm)
        idx_code(t+4)
        A(f'v_lshlrev_b32 v{t+4}, 7, v{t+4}\n s_mov_b32 s{sT}, {FLAG_OFF + stage*0x8000}')
        m = (1 << nlanes) - 1
        A(f's_mov_b32 exec_lo, {hex(m & 0xffffffff)}\n s_mov_b32 exec_hi, {hex(m >> 32)}')
        self.spin(f'buffer_load_dword v{t+5}, v{t+4}, s[12:15], s{sT} offen {SC}', f'v_cmp_ne_u32 vcc, s{sNonce}, v{t+5}', t+5)
        A('s_mov_b64 exec, -1')
        A.raw(f'{l}:')
        A.st.vm = sv or [(set(), None)]
        A.wait(vm=0); A.barrier()

    def l2_prefetch(self, srd, nbytes, vdst):
        A = self.A; t = self.t
        share = (nbytes // 32 + 127) // 128 * 128
        n = (share + 32767) // 32768
        A(f's_mul_i32 s{sT}, s{sLoc}, {share}\n v_lshlrev_b32 v{t+6}, 7, v0')
        for i in range(n):
            if i: A(f's_add_u32 s{sT}, s{sT}, 32768')
            rem = share - i*32768
            if rem < 32768:
                A(f'v_cmp_gt_u32 vcc, {rem}, v{t+6}\n v_mov_b32 v{t+7}, 0x7fff0000\n v_cndmask_b32 v{t+6}, v{t+7}, v{t+6}, vcc')
            A(f'buffer_load_dword v{vdst}, v{t+6}, s[{srd}:{srd+3}], s{sT} offen', tag='pf')
            A.st.vm[-1] = (set(), 'pf')

    def build(self):
        A = self.A
        A.new_kernel(KN)
        A(f's_load_dwordx16 s[{PTR}:{PTR+15}], s[0:1], 0\n s_load_dwordx8 s[{PTR+16}:{PTR+23}], s[0:1], 64')
        A('s_cmp_ge_u32 s2, 256')
        A(f's_cbranch_scc1 {KN}_done')
        V = self.V = Alloc(1)
        self.vl = vl = V.get(); self.t = t = V.get(8, 4); self.vJunk = V.get()
        self.vL16 = V.get(); self.vT31 = V.get(); self.vH = V.get()
        if Opt.stamps:
            self.vStamp = V.get(); A(f'v_mov_b32 v{self.vStamp}, 0')
        A('s_getpc_b64 s[24:25]'); A.raw('.Lpc0:')
        A(f's_mov_b32 s26, {KN}_end-.Lpc0\n s_mov_b32 s27, 0x00020000\n v_lshlrev_b32 v{t}, 7, v0')
        for r in range(2):
            if r: A(f'v_add_u32 v{t}, 0x8000, v{t}')
            A(f'buffer_load_dword v{self.vJunk}, v{t}, s[24:27], 0 offen', tag='pf'); A.st.vm[-1] = (set(), 'pf')
        A(f'v_lshrrev_b32 v{t+1}, 6, v0\n v_and_b32 v{vl}, 63, v0\n v_readfirstlane_b32 s{sW}, v{t+1}')
        A(f'v_lshlrev_b32 v{self.vL16}, 4, v{vl}\n v_and_b32 v{self.vT31}, 31, v{vl}\n v_lshrrev_b32 v{self.vH}, 5, v{vl}')
        A(f's_and_b32 s{sXcd}, s2, 7\n s_lshr_b32 s{sLoc}, s2, 3')
        self.stamp(0)
        base = V.snap()
        self.s1()
        V.restore(base); self.s2()
        V.restore(base); self.s3()
        V.restore(base); self.s4()
        A.raw(f'{KN}_done:')
        A('s_endpgm')
        A.raw(f'{KN}_end:')

    def s1(self):
        A, V, vl, t, vT31, vH, vL16 = self.A, self.V, self.vl, self.t, self.vT31, self.vH, self.vL16
        NS = 4
        XR, WR = 0, NS*16384
        (sRG, sCG, sTP, sJ, sPitch, sOffA, sOffB, sCb0, sCb1, sC, sXb, sXc, sWc, sP64, sWb, sMx, sMw, sP2, sP8, sP10, sTile0, sTile1, sH0) = range(S0, S0+23)
        sH1, sH2, sId = sOffA, sOffB, sCb0
        A(f's_and_b32 s{sRG}, s{sXcd}, 3\n s_lshl_b32 s{sRG}, s{sRG}, 2\n s_and_b32 s{sT}, s{sLoc}, 3\n s_add_u32 s{sRG}, s{sRG}, s{sT}')
        A(f's_lshr_b32 s{sCG}, s{sXcd}, 2\n s_lshl_b32 s{sCG}, s{sCG}, 3\n s_lshr_b32 s{sT}, s{sLoc}, 2\n s_add_u32 s{sCG}, s{sCG}, s{sT}')
        A(f's_and_b32 s{sTP}, s{sW}, 1\n s_lshr_b32 s{sJ}, s{sW}, 1')
        A(f's_and_b32 s{sT}, s{sCG}, 3\n s_mul_i32 s{sOffA}, s{sT}, 224\n s_mov_b32 s{sOffB}, s{sOffA}')
        A(f's_mul_i32 s{sT}, s{sCG}, 112\n s_add_u32 s{sT2}, s{sT}, 896\n s_add_u32 s{sT}, s{sT}, {1792-112}')
        A(f's_cmp_lt_u32 s{sCG}, 8\n s_cselect_b32 s{sOffA}, s{sT2}, s{sOffA}\n s_cselect_b32 s{sOffB}, s{sT}, s{sOffB}')
        A(f's_cselect_b32 s{sT}, 56, 112\n s_cselect_b32 s{sT2}, 112, 56')
        A(f's_cmp_ge_u32 s{sCG}, 12\n s_cselect_b32 s{sT}, 128, s{sT}\n s_cselect_b32 s{sT2}, 64, s{sT2}')
        A(f's_mov_b32 s{sPitch}, 2688\n s_cselect_b32 s{sPitch}, 896, s{sPitch}')
        A(f's_mov_b32 s10, {448*2688}\n s_cselect_b32 s10, {448*896}, s10\n s_mov_b32 s11, 0x00020000')
        A(f's_mul_i32 s{sCb0}, s{sJ}, s{sT}\n s_add_u32 s{sCb1}, s{sCb0}, s{sT2}')
        A(f's_add_u32 s{sC}, s{sCG}, s{sRG}\n s_mul_i32 s{sT}, s{sC}, 37\n s_lshr_b32 s{sT}, s{sT}, 8\n s_mul_i32 s{sT}, s{sT}, 7\n s_sub_u32 s{sC}, s{sC}, s{sT}')
        A(f's_lshl_b32 s{sP64}, s{sPitch}, 6')
        A(f's_lshl_b32 s{sXb}, s{sRG}, 4\n s_add_u32 s{sXb}, s{sXb}, s{sW}\n s_mul_i32 s{sXb}, s{sXb}, {8*896}')
        A(f's_lshl_b32 s{sMx}, s{sW}, 10')
        A(f's_lshl_b32 s{sWb}, s{sW}, 4\n s_mul_i32 s{sWb}, s{sWb}, s{sPitch}\n s_mul_i32 s{sMw}, s{sW}, {4*896}\n s_add_u32 s{sMw}, s{sMw}, {WR}')
        A(f's_lshl_b32 s{sP2}, s{sPitch}, 1\n s_lshl_b32 s{sP8}, s{sPitch}, 3\n s_add_u32 s{sP10}, s{sP2}, s{sP8}')
        vXoff = V.get(); vWoff = V.get()
        A(f'v_lshrrev_b32 v{t}, 3, v{vl}\n v_mul_u32_u24 v{t}, 896, v{t}')
        A(f'v_lshrrev_b32 v{t+1}, 4, v{vl}\n s_lshl_b32 s{sT}, s{sTP}, 2\n v_or_b32 v{t+1}, s{sT}, v{t+1}')
        A(f'v_and_b32 v{t+2}, 7, v{vl}\n v_xor_b32 v{t+1}, v{t+1}, v{t+2}\n v_lshl_add_u32 v{vXoff}, v{t+1}, 4, v{t}')
        w224_dma_off(A, vWoff, vl, t, sPitch, sOffA, sOffB)
        srow = V.get(8, 4); vSo = V.get()
        A(f'v_cmp_gt_u32 vcc, 56, v{vl}\n v_mov_b32 v{t}, 0x7fff0000\n v_cndmask_b32 v{vSo}, v{t}, v{vL16}, vcc')
        sTok = sH0
        A(f's_lshl_b32 s{sTok}, s{sRG}, 4\n s_add_u32 s{sTok}, s{sTok}, s{sCG}\n s_lshl_b32 s{sTok}, s{sTok}, 2\n s_add_u32 s{sTok}, s{sTok}, s{sW}\n s_lshl_b32 s{sTok}, s{sTok}, 1')
        A(f's_mul_i32 s{sT3}, s{sTok}, 896')
        self.set_srd(SRD_X, 0, 2048*896)
        A(f's_cmp_ge_u32 s{sCG}, 12')
        A(f's_cselect_b32 s8, s{ptr(5)}, s{ptr(1)}\n s_cselect_b32 s9, s{ptr(5)+1}, s{ptr(1)+1}')
        for i in range(2): A(f'buffer_load_dwordx4 v[{srow+4*i}:{srow+4*i+3}], v{vSo}, s[4:7], s{sT3} offen offset:{i*896}')
        self.set_srd(SRD_WS, 11, WS_SIZE)
        self.set_srd(SRD_P, 10, 256)
        l = self.lab('lead')
        A(f's_or_b32 s{sT}, s2, s{sW}\n s_cmp_lg_u32 s{sT}, 0'); A(f's_cbranch_scc1 {l}')
        sv = list(A.st.vm)
        A(f's_memrealtime s[58:59]\n s_or_b32 s{sT}, s58, 1\n v_mov_b32 v{t}, s{sT}\n v_mov_b32 v{t+1}, 0\n s_mov_b64 exec, 1')
        A(f'buffer_store_dword v{t}, v{t+1}, s[16:19], 0 offen {SC}\n s_mov_b64 exec, -1')
        A.st.vm = sv
        A.raw(f'{l}:')

        def dma_x(ci, i):
            if i == 0: A(f's_lshl_b32 s{sXc}, s{sC}, 7\n s_add_u32 s{sXc}, s{sXc}, s{sXb}')
            else: A(f's_add_u32 s{sXc}, s{sXc}, {32*896}')
            A(f's_add_u32 m0, s{sMx}, {XR + (ci % NS)*16384 + i*4096}')
            A(f'buffer_load_dwordx4 v{vXoff}, s[4:7], s{sXc} offen lds', tag=('c', ci))
        def dma_w2(ci, p):
            if p == 0: A(f's_mul_i32 s{sWc}, s{sC}, s{sP64}\n s_add_u32 s{sWc}, s{sWc}, s{sWb}')
            A(EXEC56)
            for i in (2*p, 2*p+1):
                A(f's_add_u32 m0, s{sMw}, {(ci % NS)*14336 + i*896}')
                if i == 0: so = sWc
                else:
                    A(f's_add_u32 s{sT}, s{sWc}, s{[0, sP2, sP8, sP10][i]}'); so = sT
                A(f'buffer_load_dwordx4 v{vWoff}, s[8:11], s{so} offen lds', tag=('c', ci))
            A(EXEC64)
        def next_chunk():
            A(f's_add_u32 s{sC}, s{sC}, 1\n s_cmp_eq_u32 s{sC}, 7\n s_cselect_b32 s{sC}, 0, s{sC}')
        def dma_part(ci, s):
            if s == 0: dma_x(ci, 0); dma_x(ci, 1)
            elif s == 1: dma_w2(ci, 0)
            elif s == 2: dma_x(ci, 2); dma_x(ci, 3)
            else: dma_w2(ci, 1); next_chunk()
        for s in range(4): dma_part(0, s)
        vN = V.get()
        A(f'v_mov_b32 v{t+3}, 0')
        A(f'buffer_load_dword v{vN}, v{t+3}, s[16:19], 0 offen {SC}')
        for s in range(4): dma_part(1, s)

        vXa = [V.get() for s in range(4)]
        vWa = [V.get() for f in range(2)]
        A(f'v_bfe_u32 v{t}, v{vl}, 1, 3\n v_xor_b32 v{t}, v{t}, v{vH}')
        A(f's_lshl_b32 s{sTile0}, s{sRG}, 2\n s_lshl_b32 s{sT}, s{sTP}, 1\n s_add_u32 s{sTile0}, s{sTile0}, s{sT}\n s_add_u32 s{sTile1}, s{sTile0}, 1')
        A(f's_lshl_b32 s{sT}, s{sTP}, 13\n v_lshlrev_b32 v{t+1}, 7, v{vT31}\n v_add_u32 v{t+1}, s{sT}, v{t+1}')
        for s in range(4):
            A(f'v_xor_b32 v{t+2}, {2*s}, v{t}\n v_lshl_add_u32 v{vXa[s]}, v{t+2}, 4, v{t+1}')
        A(f'v_bfe_u32 v{t}, v{vl}, 2, 2\n v_lshl_add_u32 v{t}, v{vH}, 2, v{t}\n v_mul_u32_u24 v{t}, 448, v{t}\n v_add_u32 v{t}, {WR}, v{t}')
        A(f'v_bfe_u32 v{t+1}, v{vl}, 4, 1\n v_lshlrev_b32 v{t+1}, 5, v{t+1}\n v_and_b32 v{t+2}, 3, v{vl}\n v_lshl_add_u32 v{t+1}, v{t+2}, 3, v{t+1}')
        A(f'v_add3_u32 v{vWa[0]}, s{sCb0}, v{t}, v{t+1}')
        A(f'v_add_u32 v{t+1}, s{sCb1}, v{t+1}\n v_min_u32 v{t+1}, 216, v{t+1}\n v_add_u32 v{vWa[1]}, v{t}, v{t+1}')
        vOnes = V.get(4); ones_mask_frag(A, vOnes, vl, t)
        vPo = V.get(); vPo2 = V.get()
        A(f'v_cmp_lt_u32 vcc, 27, v{vT31}\n v_subrev_u32 v{t}, 2, v{vT31}\n v_cndmask_b32 v{t}, v{vT31}, v{t}, vcc')
        A(f'v_mul_u32_u24 v{t+1}, 112, v{vH}\n v_add_lshl_u32 v{vPo}, v{t}, v{t+1}, 1')
        A(f'v_and_b32 v{t}, 26, v{vT31}\n v_cmp_eq_u32 vcc, 26, v{t}\n v_mov_b32 v{t+1}, 0x7fff0000\n v_cndmask_b32 v{vPo}, v{vPo}, v{t+1}, vcc')
        A(f'v_cmp_eq_u32 vcc, 1, v{vH}\n v_cndmask_b32 v{vPo2}, v{vPo}, v{t+1}, vcc')
        A(f's_lshl_b32 s{sId}, s{sRG}, 4\n s_add_u32 s{sId}, s{sId}, s{sCG}')

        sa = V.get(4)
        A(f's_mov_b32 s{sT}, 0x3f803f80')
        for i in range(2):
            for d in range(4):
                x = srow + 4*i + d
                A(f'v_dot2_f32_bf16 v{sa+2*i}, v{x}, s{sT}, ' + ('0' if d == 0 else f'v{sa+2*i}'))
                A(f'v_dot2_f32_bf16 v{sa+2*i+1}, v{x}, v{x}, ' + ('0' if d == 0 else f'v{sa+2*i+1}'))
        for ctl in ('row_shr:1', 'row_shr:2', 'row_shr:4', 'row_shr:8', 'row_bcast:15 row_mask:0xa', 'row_bcast:31 row_mask:0xc'):
            for k in range(4):
                rm = '' if 'row_mask' in ctl else ' row_mask:0xf'
                A(f'v_add_f32_dpp v{sa+k}, v{sa+k}, v{sa+k} {ctl}{rm} bank_mask:0xf')
        A(f'v_readfirstlane_b32 s{sNonce}, v{vN}')
        l = self.lab('nonce')
        A(f's_cmp_lg_u32 s{sNonce}, 0'); A(f's_cbranch_scc1 {l}')
        sv = list(A.st.vm)
        A(f'v_mov_b32 v{t+3}, 0')
        self.spin(f'buffer_load_dword v{vN}, v{t+3}, s[16:19], 0 offen {SC}', f'v_cmp_eq_u32 vcc, 0, v{vN}', vN)
        A(f'v_readfirstlane_b32 s{sNonce}, v{vN}\n s_nop 3')
        A.st.vm = sv
        A.raw(f'{l}:')
        A(f's_mov_b32 s{sT}, {fl(1.0/448)}')
        g = srow
        for i in range(2):
            A(f'v_mul_f32 v{g+4*i}, s{sT}, v{sa+2*i}\n v_mul_f32 v{g+4*i+2}, s{sT}, v{sa+2*i+1}')
            A(f'v_fma_f32 v{g+4*i+2}, -v{g+4*i}, v{g+4*i}, v{g+4*i+2}\n v_max_f32 v{g+4*i+2}, 0, v{g+4*i+2}')
            A(f'v_mov_b32 v{g+4*i+1}, s{sNonce}\n v_mov_b32 v{g+4*i+3}, s{sNonce}')
        A(f's_lshl_b32 s{sT}, s{sTok}, 4\n s_add_u32 s{sT}, s{sT}, {ST1_OFF}\n v_mov_b32 v{t}, 0\n v_mov_b32 v{t+1}, 0\n v_mov_b32 v{t+2}, 0\n v_mov_b32 v{t+3}, 0')
        A('s_mov_b32 exec_lo, 0\n s_mov_b32 exec_hi, 0x80000000')
        for i in range(2): A(f'buffer_store_dwordx4 v[{g+4*i}:{g+4*i+3}], v{t}, s[12:15], s{sT} offen offset:{16*i} {SC}')
        A(f's_lshl_b32 s{sT}, s{sW}, 8\n s_add_u32 s{sT}, s{sT}, s2\n s_lshl_b32 s{sT}, s{sT}, 7\n s_add_u32 s{sT}, s{sT}, {FLAG_OFF}')
        A('s_mov_b64 exec, 0xff')
        if 'nopt' not in Opt.x: A(f'buffer_load_dword v{self.vJunk}, v{t}, s[12:15], s{sT} offen', tag='pf'); A.st.vm[-1] = (set(), 'pf')
        A('s_mov_b64 exec, -1')
        self.set_srd(SRD_P, 2, 16*28*28*2)
        V.free(sa, vN, vSo)

        acc = [[V.get(16) for e in range(2)] for f in range(2)]
        cs = [V.get(4) for f in range(2)]
        fx = [[V.get(4) for e in range(2)] for b in range(2)]
        fw = [[V.get(4) for f in range(2)] for b in range(2)]
        wphi = [V.get(8, 4) for i in range(2)]
        wraw = [V.get(16) for i in range(2)]
        stg = mk = V.get(8, 4)
        def load_wphi(idx, shead, lo, hi):
            for q in range(lo, hi):
                i, j = divmod(q, 8)
                d0 = (j & 3) + 8*(2*i + (j >> 2))
                off = vPo2 if d0 >= 24 else vPo
                A(f'buffer_load_ushort v{wraw[idx] + q}, v{off}, s[16:19], s{shead} offen offset:{d0*56}', tag='wphi')
        def pack_wphi(idx):
            for i in range(8): A(f'v_lshl_or_b32 v{wphi[idx]+i}, v{wraw[idx]+2*i+1}, 16, v{wraw[idx]+2*i}')
        vSg = V.get()
        A(f'v_lshlrev_b32 v{vSg}, 4, v{vT31}')
        sSg = sCb1
        A(f's_lshl_b32 s{sSg}, s{sTile0}, 9\n s_add_u32 s{sSg}, s{sSg}, {ST1_OFF}')
        def load_stats():
            for e in range(2): A(f'buffer_load_dwordx4 v[{stg+4*e}:{stg+4*e+3}], v{vSg}, s[12:15], s{sSg} offen offset:{512*e} {SC}')
        def rd(n):
            ci, s = divmod(n, 4); slot = ci % NS; b = n & 1
            r = [f'ds_read_b128 v[{fx[b][e]}:{fx[b][e]+3}], v{vXa[s]} offset:{slot*16384 + e*4096}' for e in range(2)]
            w = [f'ds_read_b64_tr_b16 v[{fw[b][f]+2*sec}:{fw[b][f]+2*sec+1}], v{vWa[f]} offset:{slot*14336 + s*3584 + sec*224}' for f in range(2) for sec in range(2)]
            return [w[0], w[1], r[0], r[1], w[2], w[3]]
        def mainloop(kv, extra):
            A.wait_tag(('c', 0)); A.barrier()
            self.stamp(1)
            for x in rd(0): A(x)
            for n in range(28):
                b = n & 1; z = '0' if n == 0 else None
                def M(f, e):
                    if kv and f == 1: A(mfma32(acc[f][e], fx[b][e], fw[b][f], z))
                    else: A(mfma32(acc[f][e], fw[b][f], fx[b][e], z))
                R = rd(n+1) if n + 1 < 28 else []
                def Rr(k):
                    for x in R[k:k+2]: A(x)
                bound = (n + 1) % 4 == 0 and n + 1 < 28
                M(0, 0)
                if not bound: Rr(0)
                M(0, 1)
                if not bound: Rr(2)
                A(mfma16(cs[0], vOnes, fw[b][0], z))
                M(1, 0)
                if bound:
                    A.wait_tag(('c', (n+1)//4)); A.barrier(); Rr(0); Rr(2)
                else: Rr(4)
                M(1, 1)
                if bound: Rr(4)
                if n // 4 + 2 <= 6: dma_part(n // 4 + 2, n % 4)
                else: extra(n)
                A(mfma16(cs[1], vOnes, fw[b][1], z))
            self.stamp(2)
        st_m = [stg, stg+4]; st_var = [stg+2, stg+6]; st_r = [stg+1, stg+5]; st_sig = [stg+3, stg+7]
        cx = [V.get(4) for e in range(2)]; cw = [V.get(4) for f in range(2)]
        def finish_stats():
            chk = (f'v_xor_b32 v{t}, v{stg+1}, v{stg+3}\n v_xor_b32 v{t+1}, v{stg+5}, v{stg+7}\n v_xor_b32 v{t+2}, s{sNonce}, v{stg+1}\n v_xor_b32 v{t+3}, s{sNonce}, v{stg+5}\n'
                   f'v_or3_b32 v{t}, v{t}, v{t+1}, v{t+2}\n v_or_b32 v{t}, v{t}, v{t+3}\n v_cmp_ne_u32 vcc, 0, v{t}')
            A(chk)
            l = self.lab('stok')
            A('s_nop 1'); A(f's_cbranch_vccz {l}')
            sv = list(A.st.vm); sl = list(A.st.lg)
            ld = '\n'.join(f'buffer_load_dwordx4 v[{stg+4*e}:{stg+4*e+3}], v{vSg}, s[12:15], s{sSg} offen offset:{512*e} {SC}' for e in range(2))
            self.spin(ld, chk, None)
            A.st.vm = sv; A.st.lg = sl
            A.raw(f'{l}:')
            for e in range(2):
                A(f'v_add_f32 v{t+e}, {fl(1e-5)}, v{st_var[e]}\n v_rsq_f32 v{st_r[e]}, v{t+e}')
            for e in range(2):
                A(f'v_mul_f32 v{st_sig[e]}, v{t+e}, v{st_r[e]}')
        A('s_mov_b32 s54, -1\n s_mov_b32 s55, 0') if False else None
        mLo, mLo28 = 's[56:57]', 's[58:59]'
        def masks(): A('s_mov_b32 s56, -1\n s_mov_b32 s57, 0\n s_mov_b32 s58, 0x0fffffff\n s_mov_b32 s59, 0')
        assert S0 + 23 <= 58
        assert sTile1 == S0+21 and sH0 == S0+22
        mLo, mLo28 = f's[{sXb+0 if sXb%2==0 else sXb+1}:{(sXb+0 if sXb%2==0 else sXb+1)+1}]', None
        m0_ = sXb if sXb % 2 == 0 else sXb + 1
        mLo = f's[{m0_}:{m0_+1}]'; mLo28 = f's[{m0_+2}:{m0_+3}]'
        def masks(): A(f's_mov_b32 s{m0_}, -1\n s_mov_b32 s{m0_+1}, 0\n s_mov_b32 s{m0_+2}, 0x0fffffff\n s_mov_b32 s{m0_+3}, 0')
        def prefetch_next(n):
            if n == 24:
                self.set_srd(SRD_W2, 6, 448*896); self.l2_prefetch(SRD_W2, 448*896, self.vJunk)
            if n == 25:
                self.set_srd(SRD_W2, 7, 448*3584); self.l2_prefetch(SRD_W2, 448*3584, self.vJunk)
        V.free(vXa, vWa, vOnes, fx, fw, vPo, vPo2, vXoff, vWoff, srow)
        vtop = V.snap()
        lq, lw1, lend = self.lab('qw'), self.lab('w1'), self.lab('s1end')

        A(f's_cmp_ge_u32 s{sCG}, 8')
        A.branch('s_cbranch_scc1', lq)
        A(f's_lshl_b32 s{sH0}, s{sCG}, 1\n s_add_u32 s{sH0}, s{sH0}, s{sJ}\n s_mul_i32 s{sH1}, s{sH0}, 1568')
        def extra(n):
            if 20 <= n < 24: load_wphi(0, sH1, (n-20)*4, (n-20)*4+4)
            prefetch_next(n)
            if n == 26: load_stats()
        mainloop(True, extra)
        masks()
        idf = V.get(8, 4)
        A(f'v_bfe_u32 v{t}, v{vl}, 2, 1\n v_cmp_eq_u32 vcc, v{t}, v{vH}')
        A(f'v_and_b32 v{t}, 1, v{vl}\n v_lshlrev_b32 v{t}, 4, v{t}\n v_mov_b32 v{t+1}, 0x3f80\n v_lshlrev_b32 v{t+1}, v{t}, v{t+1}')
        A(f'v_cndmask_b32 v{t+1}, 0, v{t+1}, vcc')
        A(f'v_bfe_u32 v{t}, v{vl}, 1, 1\n v_bfe_u32 v{t+2}, v{vl}, 3, 2\n v_lshl_add_u32 v{t}, v{t+2}, 1, v{t}')
        for d in range(8):
            A(f'v_cmp_eq_u32 vcc, {d}, v{t}\n v_cndmask_b32 v{idf+d}, 0, v{t+1}, vcc')
        corr_wfrag(A, cw[0], cs[0], t, mLo)
        corr_wfrag(A, cw[1], cs[1], t, mLo28)
        A('s_mov_b32 exec_lo, 0x10000000\n s_mov_b32 exec_hi, 0')
        A(f'v_mov_b32 v{cw[1]+1}, 0x3f800000\n v_mov_b32 v{cw[1]+2}, 0x3f80')
        A('s_mov_b32 exec_lo, 0xf0000000\n s_mov_b32 exec_hi, 0xf0000000')
        for e in range(2):
            for r in range(16): A(f'v_mov_b32 v{acc[1][e]+r}, 0')
        A('s_mov_b64 exec, -1')
        pack_wphi(0)
        finish_stats()
        for e in range(2): corr_xfrag(A, cx[e], st_m[e], st_sig[e], t)
        for e in range(2): A(mfma32(acc[0][e], cw[0], cx[e]))
        for e in range(2): A(mfma32(acc[1][e], cx[e], cw[1]))
        V.free(wraw, wphi[1])
        kb = [V.get(8, 4) for e in range(2)]; vb = [V.get(8, 4) for e in range(2)]
        pkk = [V.get(16) for e in range(2)]
        for e in range(2):
            for i in range(8): A(f'v_cvt_pk_bf16_f32 v{kb[e]+i}, v{acc[0][e]+2*i}, v{acc[0][e]+2*i+1}')
            A(mfma32(pkk[e], wphi[0], kb[e], '0')); A(mfma32(pkk[e], wphi[0]+4, kb[e]+4))
        for e in range(2):
            for i in range(8): A(f'v_cvt_pk_bf16_f32 v{vb[e]+i}, v{acc[1][e]+2*i}, v{acc[1][e]+2*i+1}')
        cb = V.get(2); ebuf = V.get(14, 2); tmp = V.get(4)
        ph = [kb[0], kb[1]]; tr = [acc[0][0], acc[0][1]]; kvacc = [acc[1][0], acc[1][1]]
        tb = V.get(8, 4)
        for e in range(2):
            A(f'v_mul_f32 v{cb}, {fl(LOG2E)}, v{st_r[e]}')
            softmax_pair(A, pkk[e], cb, ebuf, ph[0], ph[1], tmp, scale=st_r[e])
            for sg in range(2):
                A(mfma32(tr[sg], ph[sg], idf, '0')); A(mfma32(tr[sg], ph[sg]+4, idf+4))
            for sg in range(2):
                for i in range(8): A(f'v_cvt_pk_bf16_f32 v{tb+i}, v{tr[sg]+2*i}, v{tr[sg]+2*i+1}')
                A(mfma32(kvacc[sg], tb, vb[e], '0' if e == 0 else None)); A(mfma32(kvacc[sg], tb+4, vb[e]+4))
        A(f's_lshl_b32 s{sT}, s{sH0}, 5\n s_lshr_b32 s{sT2}, s{sTile0}, 1\n s_add_u32 s{sT}, s{sT}, s{sT2}')
        A(f's_lshl_b32 s{sT}, s{sT}, 12\n s_add_u32 s{sT}, s{sT}, {KVP_OFF}')
        for sg in range(2):
            o = ph[sg]
            for i in range(8): A(f'v_cvt_pk_bf16_f32 v{o+i}, v{kvacc[sg]+2*i}, v{kvacc[sg]+2*i+1}')
            for i in range(2): A(f'buffer_store_dwordx4 v[{o+4*i}:{o+4*i+3}], v{vL16}, s[12:15], s{sT} offen offset:{(2*sg+i)*1024} {SC}')
        A(f's_branch {lend}')

        A.label(lq, False)
        V.restore(vtop)
        A(f's_and_b32 s{sH0}, s{sCG}, 3\n s_lshl_b32 s{sH0}, s{sH0}, 2\n s_lshl_b32 s{sT}, s{sJ}, 1\n s_add_u32 s{sH0}, s{sH0}, s{sT}')
        A(f's_mul_i32 s{sH1}, s{sH0}, 1568\n s_add_u32 s{sH2}, s{sH1}, 1568')
        def extra(n):
            if 20 <= n < 24:
                load_wphi(0, sH1, (n-20)*4, (n-20)*4+4); load_wphi(1, sH2, (n-20)*4, (n-20)*4+4)
            prefetch_next(n)
            if n == 26: load_stats()
        mainloop(False, extra)
        masks()
        for f in range(2): corr_wfrag(A, cw[f], cs[f], t, mLo)
        finish_stats()
        for e in range(2): corr_xfrag(A, cx[e], st_m[e], None, t)
        for f in range(2):
            for e in range(2): A(mfma32(acc[f][e], cw[f], cx[e]))
        A(f's_cmp_ge_u32 s{sCG}, 12')
        A.branch('s_cbranch_scc1', lw1)
        qb = [V.get(8, 4) for i in range(2)]; pq = [V.get(16) for i in range(2)]; rr = V.get(2)
        pack_wphi(0); pack_wphi(1)
        u = 0
        for f in range(2):
            for e in range(2):
                q = qb[u & 1]; p = pq[u & 1]; u += 1
                for i in range(8): A(f'v_cvt_pk_bf16_f32 v{q+i}, v{acc[f][e]+2*i}, v{acc[f][e]+2*i+1}')
                A(mfma32(p, wphi[f], q, '0')); A(mfma32(p, wphi[f]+4, q+4))
                A(f's_add_u32 s{sT}, s{sH0}, {f}\n s_lshl_b32 s{sT}, s{sT}, 6')
                A(f's_add_u32 s{sT}, s{sT}, s{[sTile0, sTile1][e]}\n s_lshl_b32 s{sT}, s{sT}, 11\n s_add_u32 s{sT}, s{sT}, {PQ_OFF}')
                A(f'v_mov_b32 v{rr}, v{st_r[e]}')
                for i in range(0, 16, 2): A(pk('v_pk_mul_f32', p+i, p+i, rr, selhi=[1,0]))
                o = acc[f][e]
                for i in range(8): A(f'v_cvt_pk_bf16_f32 v{o+i}, v{p+2*i}, v{p+2*i+1}')
                for i in range(2): A(f'buffer_store_dwordx4 v[{o+4*i}:{o+4*i+3}], v{vL16}, s[12:15], s{sT} offen offset:{i*1024} {SC}')
        A(f's_branch {lend}')
        A.label(lw1, False)
        V.restore(vtop)
        kk = [V.get(2) for e in range(2)]; inv = [V.get(2) for e in range(2)]; tt = V.get(16); ob = [V.get(8, 4) for i in range(2)]
        vo = [V.get() for e in range(2)]
        sD = sH2
        A(f's_and_b32 s{sT}, s{sCG}, 3\n s_lshr_b32 s{sD}, s{sT}, 1\n s_add_u32 s{sD}, s{sD}, 1\n s_sub_u32 s{sT2}, 0, s{sD}')
        A(f's_bitcmp1_b32 s{sT}, 0\n s_cselect_b32 s{sD}, s{sT2}, s{sD}')
        A(f's_mul_i32 s{sH1}, s{sT}, 7\n s_lshl_b32 s{sT}, s{sJ}, 2\n s_add_u32 s{sH1}, s{sH1}, s{sT}\n s_lshl_b32 s{sH1}, s{sH1}, 10')
        assert HS_OFF == 0
        for e in range(2):
            A(f'v_mul_f32 v{t}, v{st_r[e]}, v{st_r[e]}\n v_mov_b32 v{t+1}, {fl(1e-5)}\n v_fma_f32 v{t}, v{t}, v{st_var[e]}, v{t+1}')
            A(f'v_rsq_f32 v{t}, v{t}\n v_mul_f32 v{t}, v{t}, v{st_r[e]}')
            A(f'v_rcp_f32 v{inv[e]}, v{t}\n v_mul_f32 v{kk[e]}, {fl(GELU_C1)}, v{t}\n v_mul_f32 v{t+1}, v{t}, v{t}')
            A(f'v_mul_f32 v{t+1}, {fl(0.044715)}, v{t+1}\n v_mul_f32 v{kk[e]+1}, v{t+1}, v{kk[e]}')
            A(f's_lshl_b32 s{sT}, s{[sTile0, sTile1][e]}, 5\n s_add_u32 s{sT}, s{sT}, s{sD}')
            A(f'v_add_u32 v{t}, s{sT}, v{vT31}')
            A(f'v_cmp_lt_u32 vcc, 2047, v{t}')
            A(f'v_and_b32 v{t}, 2047, v{t}\n v_lshrrev_b32 v{t+1}, 5, v{t}\n v_mul_u32_u24 v{t+1}, {28*1024}, v{t+1}')
            A(f'v_and_b32 v{t}, 31, v{t}\n v_lshl_add_u32 v{t}, v{vH}, 5, v{t}\n v_lshl_add_u32 v{vo[e]}, v{t}, 4, v{t+1}')
            lab = self.lab('nz')
            A.branch('s_cbranch_vccz', lab)
            A('s_mov_b64 exec, vcc')
            for f in range(2):
                for r in range(16): A(f'v_mov_b32 v{acc[f][e]+r}, 0')
            A('s_mov_b64 exec, -1')
            A.label(lab, True)
        u = 0
        for f, half in ((0, 0), (0, 1), (1, 0), (1, 1)):
            if (f, half) == (1, 1):
                A(f's_cmp_eq_u32 s{sJ}, 1'); A(f's_cbranch_scc1 {lend}')
            for e in range(2):
                o = ob[u & 1]; u += 1
                gelu_pack(A, acc[f][e] + 8*half, 8, kk[e], inv[e], tt + 8*e, o)
                A(f'buffer_store_dwordx4 v[{o}:{o+3}], v{vo[e]}, s[12:15], s{sH1} offen offset:{(2*f+half)*1024} {SC}')
        A.raw(f'{lend}:')
        A('s_nop 1')
        self.stamp(3)
        A.st.vm = [(set(), None)]; A.st.lg = []
        self.publish(0, sId)
        self.stamp(4)

    def s2(self):
        A, V, vl, t, vT31, vH, vL16 = self.A, self.V, self.vl, self.t, self.vT31, self.vH, self.vL16
        sRG, sCG, sA, sB, sTile, sId, sM = range(S0, S0+7)
        la, lend, lskip = self.lab('s2a'), self.lab('s2end'), self.lab('s2skip')
        vtop = V.snap()
        A(f's_cmp_ge_u32 s{sLoc}, 30'); A(f's_cbranch_scc1 {lskip}')
        A(f's_cmp_ge_u32 s{sLoc}, 14')
        A.branch('s_cbranch_scc1', la)
        A(f's_and_b32 s{sT}, s{sLoc}, 1\n s_lshl_b32 s{sRG}, s{sXcd}, 1\n s_add_u32 s{sRG}, s{sRG}, s{sT}\n s_lshr_b32 s{sCG}, s{sLoc}, 1')
        A(f's_lshl_b32 s{sTile}, s{sRG}, 2\n s_add_u32 s{sTile}, s{sTile}, s{sW}')
        A(f's_lshl_b32 s{sId}, s{sRG}, 3\n s_add_u32 s{sId}, s{sId}, s{sCG}')
        self.set_srd(SRD_W, 6, 448*896)
        A(f's_lshl_b32 s{sT}, s{sCG}, 7')
        vWoff = V.get(); w128_dma_off(A, vWoff, vl, t, sT)
        A(f's_mul_i32 s{sB}, s{sW}, {112*896}\n s_mul_i32 s{sM}, s{sW}, {14*1024}')
        for i in range(14):
            A(f's_add_u32 m0, s{sM}, {i*1024}\n s_add_u32 s{sT}, s{sB}, {i*8*896}')
            A(f'buffer_load_dwordx4 v{vWoff}, s[8:11], s{sT} offen lds')
        xr = V.get(16); st = V.get(4)
        A(f'v_mul_u32_u24 v{t}, 896, v{vT31}\n v_lshl_add_u32 v{t}, v{vH}, 4, v{t}')
        A(f's_mul_i32 s{sT}, s{sTile}, {32*896}\n s_lshl_b32 s{sA}, s{sCG}, 7\n s_add_u32 s{sT}, s{sT}, s{sA}')
        for i in range(4): A(f'buffer_load_dwordx4 v[{xr+4*i}:{xr+4*i+3}], v{t}, s[4:7], s{sT} offen offset:{32*i}')
        vWa = [V.get(), V.get()]
        w128_read_addr(A, vWa[0], vl, t+1); A(f'v_xor_b32 v{vWa[1]}, 64, v{vWa[0]}')
        xf = V.get(32)
        for f in range(2): unpack_x_tile(A, xr + 8*f, xf + 16*f)
        A(f's_mul_i32 s{sA}, s{sTile}, {28*1024}')
        def idx(d):
            A(f'v_and_b32 v{d}, 3, v{vl}')
            A(f'v_lshlrev_b32 v{d+1}, 1, v{vl}\n v_and_b32 v{d+1}, 2, v{d+1}\n v_bfe_u32 v{d+2}, v{vl}, 1, 1\n v_or_b32 v{d+1}, v{d+1}, v{d+2}')
            A(f'v_lshlrev_b32 v{d+2}, 5, v{d+2}\n v_add_u32 v{d+1}, v{d+1}, v{d+2}\n v_subrev_u32 v{d+1}, 16, v{d+1}')
            A(f'v_cmp_gt_u32 vcc, 4, v{vl}\n v_cndmask_b32 v{d}, v{d+1}, v{d}, vcc')
            A(f's_lshl_b32 s{sT2}, s{sRG}, 4\n s_add_u32 s{sT2}, s{sT2}, 12\n v_add_u32 v{d}, s{sT2}, v{d}\n v_and_b32 v{d}, 255, v{d}')
        self.poll(0, 8, idx)
        self.stamp(5)
        acc = [V.get(16) for f in range(2)]
        fw = [[V.get(4) for f in range(2)] for b in range(2)]
        def ld(n):
            if n and n % 4 == 0: A(f's_add_u32 s{sA}, s{sA}, 4096')
            A(f'buffer_load_dwordx4 a[{4*n}:{4*n+3}], v{vL16}, s[12:15], s{sA} offen offset:{(n%4)*1024} {SC}')
        def rd(n): return [f'ds_read_b64_tr_b16 v[{fw[n&1][f]+2*sec}:{fw[n&1][f]+2*sec+1}], v{vWa[f]} offset:{n*2048 + sec*1024}' for f in range(2) for sec in range(2)]
        D = 12
        for n in range(D): ld(n)
        for x in rd(0): A(x)
        for n in range(28):
            R = rd(n+1) if n < 27 else []
            z = '0' if n == 0 else None
            A(mfma32(acc[0], fw[n&1][0], ar(4*n, 4), z))
            for x in R[:2]: A(x)
            A(mfma32(acc[1], fw[n&1][1], ar(4*n, 4), z))
            for x in R[2:]: A(x)
            if n + D < 28: ld(n + D)
            if n + D == 28:
                A(f's_lshl_b32 s{sT}, s{sTile}, 9\n s_add_u32 s{sT}, s{sT}, {ST1_OFF}\n v_lshlrev_b32 v{t}, 4, v{vT31}')
                A(f'buffer_load_dwordx4 v[{st}:{st+3}], v{t}, s[12:15], s{sT} offen {SC}')
        self.stamp(6)
        ob = V.get(16); sq = V.get(4)
        A(f'v_add_f32 v{st+2}, {fl(1e-5)}, v{st+2}\n v_rsq_f32 v{st+1}, v{st+2}\n v_mul_f32 v{st}, v{st}, v{st+1}')
        for i in range(0, 32, 2):
            A(pk('v_pk_fma_f32', xf+i, xf+i, st, st, sel=[0,1,0], selhi=[1,1,0], neg=[0,0,1]))
        A(f's_mul_i32 s{sT}, s{sTile}, {28*1024}\n s_lshl_b32 s{sA}, s{sCG}, 12\n s_add_u32 s{sT}, s{sT}, s{sA}\n s_add_u32 s{sT}, s{sT}, {X1_OFF}')
        for f in range(2):
            for i in range(0, 16, 2): A(pk('v_pk_add_f32', xf+16*f+i, xf+16*f+i, acc[f]+i))
            for i in range(8): A(f'v_cvt_pk_bf16_f32 v{ob+8*f+i}, v{xf+16*f+2*i}, v{xf+16*f+2*i+1}')
            for i in range(2): A(f'buffer_store_dwordx4 v[{ob+8*f+4*i}:{ob+8*f+4*i+3}], v{vL16}, s[12:15], s{sT} offen offset:{(2*f+i)*1024} {SC}')
        A(pk('v_pk_add_f32', sq, xf, xf+2)); A(pk('v_pk_mul_f32', sq+2, xf, xf)); A(pk('v_pk_fma_f32', sq+2, xf+2, xf+2, sq+2))
        for i in range(4, 32, 2):
            A(pk('v_pk_add_f32', sq, sq, xf+i)); A(pk('v_pk_fma_f32', sq+2, xf+i, xf+i, sq+2))
        A(f'v_add_f32 v{sq}, v{sq}, v{sq+1}\n v_add_f32 v{sq+1}, v{sq+2}, v{sq+3}')
        A(f's_mul_i32 s{sT}, s{sTile}, 7\n s_add_u32 s{sT}, s{sT}, s{sCG}\n s_lshl_b32 s{sT}, s{sT}, 9\n s_add_u32 s{sT}, s{sT}, {ST2_OFF}')
        A(f'v_lshlrev_b32 v{t}, 3, v{vl}')
        A(f'buffer_store_dwordx2 v[{sq}:{sq+1}], v{t}, s[12:15], s{sT} offen {SC}')
        A(f's_branch {lend}')
        A.label(la, False)
        V.restore(vtop)
        sHd, sTG = sRG, sCG
        A(f's_sub_u32 s{sT2}, s{sLoc}, 14\n s_and_b32 s{sT}, s{sT2}, 1\n s_lshl_b32 s{sHd}, s{sXcd}, 1\n s_add_u32 s{sHd}, s{sHd}, s{sT}\n s_lshr_b32 s{sTG}, s{sT2}, 1')
        A(f's_lshl_b32 s{sTile}, s{sTG}, 3\n s_lshl_b32 s{sT}, s{sW}, 1\n s_add_u32 s{sTile}, s{sTile}, s{sT}')
        A(f's_lshl_b32 s{sId}, s{sTG}, 4\n s_add_u32 s{sId}, s{sId}, s{sHd}\n s_add_u32 s{sId}, s{sId}, 128')
        def idx(d):
            A(f's_lshr_b32 s{sT2}, s{sHd}, 1\n v_lshl_add_u32 v{d}, v{vl}, 4, s{sT2}')
            A(f's_lshr_b32 s{sT2}, s{sHd}, 2\n s_add_u32 s{sT2}, s{sT2}, 8\n s_lshl_b32 s{sT3}, s{sTG}, 5\n s_add_u32 s{sT2}, s{sT2}, s{sT3}')
            A(f'v_and_b32 v{d+1}, 1, v{vl}\n v_lshl_add_u32 v{d+1}, v{d+1}, 4, s{sT2}')
            A(f'v_cmp_gt_u32 vcc, 16, v{vl}\n v_cndmask_b32 v{d}, v{d+1}, v{d}, vcc')
        self.poll(0, 18, idx)
        self.stamp(5)
        pqr = V.get(16)
        A(f's_lshl_b32 s{sT}, s{sHd}, 6\n s_add_u32 s{sT}, s{sT}, s{sTile}\n s_lshl_b32 s{sT}, s{sT}, 11\n s_add_u32 s{sT}, s{sT}, {PQ_OFF}')
        for i in range(4): A(f'buffer_load_dwordx4 v[{pqr+4*i}:{pqr+4*i+3}], v{vL16}, s[12:15], s{sT} offen offset:{i*1024} {SC}')
        kp = V.get(128)
        A(f's_lshl_b32 s{sA}, s{sHd}, 17\n s_lshl_b32 s{sT}, s{sW}, 10\n s_add_u32 s{sA}, s{sA}, s{sT}\n s_add_u32 s{sA}, s{sA}, {KVP_OFF}')
        for p in range(32):
            A(f'buffer_load_dwordx4 v[{kp+4*p}:{kp+4*p+3}], v{vL16}, s[12:15], s{sA} offen {SC}')
            if p < 31: A(f's_add_u32 s{sA}, s{sA}, 4096')
        pf = V.get(16); cb = V.get(2); ebuf = V.get(14, 2); tmp = V.get(4)
        ph = [[V.get(8, 4) for sg in range(2)] for e in range(2)]
        for e in range(2):
            unpack16(A, pqr + 8*e, pf, 7)
            A(f'v_mov_b32 v{cb}, {fl(LOG2E)}')
            softmax_pair(A, pf, cb, ebuf, ph[e][0], ph[e][1], tmp)
        ka = pf
        A(f's_mov_b32 s{sA}, 0x3f80\n s_mov_b32 s{sB}, 0x3f800000')
        for p in range(32):
            for i in range(4):
                c0 = '0' if p == 0 else f'v{ka+2*i}'; c1 = '0' if p == 0 else f'v{ka+2*i+1}'
                A(f'v_dot2_f32_bf16 v{ka+2*i}, v{kp+4*p+i}, s{sA}, {c0}\n v_dot2_f32_bf16 v{ka+2*i+1}, v{kp+4*p+i}, s{sB}, {c1}')
        self.stamp(6)
        for i in range(4): A(f'v_cvt_pk_bf16_f32 v{ka+8+i}, v{ka+2*i}, v{ka+2*i+1}')
        A(f'v_lshlrev_b32 v{t}, 4, v0')
        A(f'ds_write_b128 v{t}, v[{ka+8}:{ka+11}]')
        A.wait(lg=0); A.barrier()
        kf = kp
        for i in range(4): A(f'ds_read_b128 v[{kf+4*i}:{kf+4*i+3}], v{vL16} offset:{i*1024}')
        num = [kp + 16, kp + 32]
        for e in range(2):
            for i in range(4): A(mfma32(num[e], kf + 4*i, ph[e][i >> 1] + 4*(i & 1), '0' if i == 0 else None))
        A('s_mov_b32 s56, -1\n s_mov_b32 s57, 0')
        A(f's_lshl_b32 s{sT}, s{sTile}, 4\n s_add_u32 s{sT}, s{sT}, s{sHd}\n s_lshl_b32 s{sT}, s{sT}, 11\n s_add_u32 s{sT}, s{sT}, {O_OFF}')
        for e in range(2):
            n = num[e]; o = kp + 48 + 8*e
            A(f'v_mov_b32 v{cb}, v{n+12}\n v_mov_b32 v{cb+1}, v{n+12}')
            A(f'v_permlane32_swap_b32 v{cb+1}, v{cb}')
            A(f'v_add_f32 v{cb}, {fl(1e-6)}, v{cb}\n v_rcp_f32 v{cb}, v{cb}')
            for i in range(0, 16, 2): A(pk('v_pk_mul_f32', n+i, n+i, cb, selhi=[1,0]))
            for i in range(8): A(f'v_cvt_pk_bf16_f32 v{o+i}, v{n+2*i}, v{n+2*i+1}')
            A(f'v_cndmask_b32 v{o+6}, 0, v{o+6}, s[56:57]\n v_cndmask_b32 v{o+7}, 0, v{o+7}, s[56:57]')
            if e: A(f's_add_u32 s{sT}, s{sT}, {32*1024}')
            for i in range(2): A(f'buffer_store_dwordx4 v[{o+4*i}:{o+4*i+3}], v{vL16}, s[12:15], s{sT} offen offset:{i*1024} {SC}')
        A.raw(f'{lend}:')
        A('s_nop 1')
        self.stamp(7)
        A.st.vm = [(set(), None)]; A.st.lg = []
        self.publish(1, sId)
        A.raw(f'{lskip}:')
        self.stamp(8)

    W3_BYTES = 448*224
    WO_LDS = 448*224
    EX_LDS = 448*224 + 456*128
    def s3(self):
        A, V, vl, t, vT31, vH, vL16 = self.A, self.V, self.vl, self.t, self.vT31, self.vH, self.vL16
        sRG, sCG, sA, sB, sTile, sId, sM, sPitch, sOff = range(S0, S0+9)
        A(f's_and_b32 s{sT}, s{sLoc}, 1\n s_lshl_b32 s{sRG}, s{sXcd}, 1\n s_add_u32 s{sRG}, s{sRG}, s{sT}\n s_lshr_b32 s{sCG}, s{sLoc}, 1')
        A(f's_lshl_b32 s{sTile}, s{sRG}, 2\n s_add_u32 s{sTile}, s{sTile}, s{sW}')
        A(f's_lshl_b32 s{sId}, s{sRG}, 4\n s_add_u32 s{sId}, s{sId}, s{sCG}')
        A(f's_mov_b32 s{sPitch}, 3584\n s_mul_i32 s{sOff}, s{sCG}, 224')
        self.set_srd(SRD_W, 7, 448*3584)
        vWoff = V.get()
        w224_dma_off(A, vWoff, vl, t, sPitch, sOff, sOff)
        A(f's_mul_i32 s{sB}, s{sW}, {112*3584}\n s_mul_i32 s{sM}, s{sW}, {28*896}')
        A(EXEC56)
        for i in range(28):
            A(f's_add_u32 m0, s{sM}, {i*896}\n s_add_u32 s{sT}, s{sB}, {(8*(i>>1) + 2*(i&1))*3584}')
            A(f'buffer_load_dwordx4 v{vWoff}, s[8:11], s{sT} offen lds', tag='w3')
        A(EXEC64)
        self.set_srd(SRD_W2, 3, 448*896); self.l2_prefetch(SRD_W2, 448*896, self.vJunk)
        self.set_srd(SRD_P, 8, 1792*896); self.l2_prefetch(SRD_P, 1792*896, self.vJunk)
        vWa = [V.get() for f in range(2)]; vWb = [V.get() for f in range(2)]
        A(f'v_bfe_u32 v{t+1}, v{vl}, 2, 2\n v_lshl_add_u32 v{t+1}, v{t+1}, 1, v{vH}\n v_mul_u32_u24 v{t+1}, 224, v{t+1}')
        A(f'v_bfe_u32 v{t+2}, v{vl}, 4, 1\n v_lshlrev_b32 v{t+2}, 5, v{t+2}\n v_and_b32 v{t+3}, 3, v{vl}\n v_lshl_add_u32 v{t+2}, v{t+3}, 3, v{t+2}')
        A(f'v_add_u32 v{vWa[0]}, v{t+2}, v{t+1}\n v_add_u32 v{t+3}, 192, v{t+2}\n v_min_u32 v{t+3}, 216, v{t+3}\n v_add_u32 v{vWa[1]}, v{t+3}, v{t+1}')
        for f in range(2): A(f'v_add_u32 v{vWb[f]}, {16*3584}, v{vWa[f]}')
        vCa = V.get(); vCb = V.get()
        A(f's_lshl_b32 s{sT}, s{sW}, 6\n v_add_u32 v{t+3}, s{sT}, v{t+2}\n v_min_u32 v{t+3}, 216, v{t+3}\n v_add_u32 v{vCa}, v{t+3}, v{t+1}\n v_add_u32 v{vCb}, {16*3584}, v{vCa}')
        vOnes = V.get(4); ones_mask_frag(A, vOnes, vl, t+2)
        acc = [V.get(16) for f in range(4)]
        cs = V.get(4)
        fw = [[V.get(4) for f in range(4)] for b in range(2)]
        cws = [V.get(4) for f in range(4)]; cx = V.get(4)
        A.wait_tag('w3'); A.barrier()
        fl8 = [r for b in fw for r in b]
        def rdc(n):
            base, o = (vCa, n*3584) if n < 16 else (vCb, (n-16)*3584)
            for sec in range(2): A(f'ds_read_b64_tr_b16 v[{fl8[n%8]+2*sec}:{fl8[n%8]+2*sec+1}], v{base} offset:{o + sec*1792}')
        for n in range(6): rdc(n)
        for n in range(28):
            A(mfma16(cs, vOnes, fl8[n%8], '0' if n == 0 else None))
            if n + 6 < 28: rdc(n + 6)
        A('s_mov_b32 s56, -1\n s_mov_b32 s57, 0')
        corr_wfrag(A, cx, cs, t, 's[56:57]')
        A(f'v_lshlrev_b32 v{t}, 3, v0\n v_add_u32 v{t}, {self.EX_LDS}, v{t}\n ds_write_b64 v{t}, v[{cx}:{cx+1}]')
        for f in range(4): A(f'v_mov_b32 v{cws[f]+2}, 0\n v_mov_b32 v{cws[f]+3}, 0')
        A(f's_mul_i32 s{sA}, s{sTile}, {28*1024}\n s_add_u32 s{sA}, s{sA}, {X1_OFF}')
        def idx(d): A(f's_lshl_b32 s{sT2}, s{sRG}, 3\n v_add_u32 v{d}, s{sT2}, v{vl}')
        self.poll(1, 7, idx)
        self.stamp(9)
        def ld(n):
            if n and n % 4 == 0: A(f's_add_u32 s{sA}, s{sA}, 4096')
            A(f'buffer_load_dwordx4 a[{4*n}:{4*n+3}], v{vL16}, s[12:15], s{sA} offen offset:{(n%4)*1024} {SC}')
        def rd(n):
            out = []
            for f in range(4):
                i = 1 if f == 3 else 0; c = 0 if f == 3 else 64*f
                base, o = (vWa[i], n*3584) if n < 16 else (vWb[i], (n-16)*3584)
                for sec in range(2): out.append(f'ds_read_b64_tr_b16 v[{fw[n&1][f]+2*sec}:{fw[n&1][f]+2*sec+1}], v{base} offset:{o + c + sec*1792}')
            return out
        D = 8
        for n in range(D): ld(n)
        A(f'v_lshlrev_b32 v{t+1}, 3, v{vl}\n v_add_u32 v{t+1}, {self.EX_LDS}, v{t+1}')
        for f in range(4): A(f'ds_read_b64 v[{cws[f]}:{cws[f]+1}], v{t+1} offset:{f*512}')
        for x in rd(0): A(x)
        stp = V.get(14, 2)
        nld = D
        for n in range(28):
            R = rd(n+1) if n < 27 else []
            z = '0' if n == 0 else None
            for f in range(4):
                A(mfma32(acc[f], fw[n&1][f], ar(4*n, 4), z))
                for x in R[2*f:2*f+2]: A(x)
                if f in (1, 3) and nld < 28: ld(nld); nld += 1
                elif f == 3 and n == 10:
                    A(f's_mul_i32 s{sT}, s{sTile}, {7*512}\n s_add_u32 s{sT}, s{sT}, {ST2_OFF}\n v_lshlrev_b32 v{t}, 3, v{vl}')
                elif f == 3 and 11 <= n < 18:
                    g = n - 11
                    A(f'buffer_load_dwordx2 v[{stp+2*g}:{stp+2*g+1}], v{t}, s[12:15], s{sT} offen offset:{g*512} {SC}')
        self.stamp(10)
        for g in range(1, 7): A(pk('v_pk_add_f32', stp, stp, stp+2*g))
        xhalf(A, 'v_add_f32', stp, t); xhalf(A, 'v_add_f32', stp+1, t+1)
        vm, vr_ = stp+2, stp+3
        kk = stp+4; inv = stp+6
        A(f's_mov_b32 s{sT}, {fl(1.0/448)}')
        A(f'v_mul_f32 v{vm}, s{sT}, v{stp}\n v_mul_f32 v{t}, s{sT}, v{stp+1}\n v_fma_f32 v{t}, -v{vm}, v{vm}, v{t}\n v_max_f32 v{t}, 0, v{t}')
        corr_xfrag(A, cx, vm, None, t+1)
        for f in range(4): A(mfma32(acc[f], cws[f], cx))
        A(f'v_add_f32 v{t}, {fl(1e-5)}, v{t}\n v_rsq_f32 v{vr_}, v{t}\n v_mul_f32 v{inv}, v{t}, v{vr_}')
        A(f'v_mul_f32 v{kk}, {fl(GELU_C1)}, v{vr_}\n v_mul_f32 v{t}, v{vr_}, v{vr_}\n v_mul_f32 v{t}, {fl(0.044715)}, v{t}\n v_mul_f32 v{kk+1}, v{t}, v{kk}')
        A(f's_mul_i32 s{sT}, s{sTile}, {112*1024}\n s_mul_i32 s{sT2}, s{sCG}, {7*1024}\n s_add_u32 s{sT}, s{sT}, s{sT2}\n s_add_u32 s{sT}, s{sT}, {H3_OFF}')
        A(f's_add_u32 s{sT2}, s{sT}, 4096')
        tt = V.get(16); ob = V.get(32)
        for f in range(4):
            n = 16 if f < 3 else 8
            o = ob + 8*f
            gelu_pack(A, acc[f], n, kk, inv, tt, o)
            for i in range(n // 8):
                ks = 2*f + i
                A(f'buffer_store_dwordx4 v[{o+4*i}:{o+4*i+3}], v{vL16}, s[12:15], s{sT if ks < 4 else sT2} offen offset:{(ks % 4)*1024} {SC}')
        self.stamp(11)
        self.publish(2, sId)

    def s4(self):
        A, V, vl, t, vT31, vH, vL16 = self.A, self.V, self.vl, self.t, self.vT31, self.vH, self.vL16
        sTG, sCG, sA, sB, sTile, sM, sTT, sKH, sXo, sO = range(S0, S0+10)
        lend = self.lab('s4end')
        A(f's_cmp_ge_u32 s{sLoc}, 28'); A(f's_cbranch_scc1 {lend}')
        A(f's_lshl_b32 s{sTG}, s{sXcd}, 2\n s_and_b32 s{sT}, s{sLoc}, 3\n s_add_u32 s{sTG}, s{sTG}, s{sT}\n s_lshr_b32 s{sCG}, s{sLoc}, 2')
        A(f's_and_b32 s{sTT}, s{sW}, 1\n s_lshr_b32 s{sKH}, s{sW}, 1')
        A(f's_lshl_b32 s{sTile}, s{sTG}, 1\n s_add_u32 s{sTile}, s{sTile}, s{sTT}')
        self.set_srd(SRD_OUT, 9, 2048*896)
        vWoff = V.get()
        A(f's_lshl_b32 s{sT}, s{sCG}, 7')
        w128_dma_off(A, vWoff, vl, t, sT)
        NSL = 39
        EX = 2*NSL*2048
        WOFF = 24*2048
        A(f's_mul_i32 s{sM}, s{sKH}, {NSL*2048}\n s_lshl_b32 s{sT}, s{sTT}, 10\n s_add_u32 s{sM}, s{sM}, s{sT}')
        A(f's_mul_i32 s{sB}, s{sKH}, {224*896}\n s_mul_i32 s{sT}, s{sTT}, {8*896}\n s_add_u32 s{sB}, s{sB}, s{sT}')
        for i in range(15):
            A(f's_add_u32 m0, s{sM}, {WOFF + i*2048}\n s_add_u32 s{sT}, s{sB}, {i*16*896}')
            A(f'buffer_load_dwordx4 v{vWoff}, s[24:27], s{sT} offen lds', tag='wo')
        A(f's_mul_i32 s{sB}, s{sKH}, {896*896}\n s_mul_i32 s{sT}, s{sTT}, {8*896}\n s_add_u32 s{sB}, s{sB}, s{sT}')
        def dma4(n):
            A(f's_add_u32 m0, s{sM}, {(n % NSL)*2048}\n s_add_u32 s{sT}, s{sB}, {n*16*896}')
            A(f'buffer_load_dwordx4 v{vWoff}, s[16:19], s{sT} offen lds', tag=('w4', n))
        vWa = [[V.get() for f in range(2)] for i in range(2)]
        w128_read_addr(A, vWa[0][0], vl, t)
        A(f's_lshl_b32 s{sT}, s{sKH}, 6\n v_xor_b32 v{vWa[0][0]}, s{sT}, v{vWa[0][0]}\n s_mul_i32 s{sT}, s{sKH}, {NSL*2048}\n v_add_u32 v{vWa[0][0]}, s{sT}, v{vWa[0][0]}')
        A(f'v_xor_b32 v{vWa[0][1]}, 64, v{vWa[0][0]}')
        for f in range(2): A(f'v_add_u32 v{vWa[1][f]}, {WOFF}, v{vWa[0][f]}')
        def idx(d): A(f's_lshl_b32 s{sT2}, s{sXcd}, 4\n s_add_u32 s{sT2}, s{sT2}, 128\n v_add_u32 v{d}, s{sT2}, v{vl}')
        self.poll(1, 16, idx)
        A(f's_lshl_b32 s{sO}, s{sTile}, 15\n s_lshl_b32 s{sT}, s{sKH}, 14\n s_add_u32 s{sO}, s{sO}, s{sT}\n s_add_u32 s{sO}, s{sO}, {O_OFF}')
        for n in range(16):
            if n and n % 4 == 0: A(f's_add_u32 s{sO}, s{sO}, 4096')
            A(f'buffer_load_dwordx4 a[{4*n}:{4*n+3}], v{vL16}, s[12:15], s{sO} offen offset:{(n%4)*1024} {SC}')
        acc = [V.get(16), V.get(16)]; sac = [V.get(16), V.get(16)]
        fw = [[V.get(4) for f in range(2)] for b in range(2)]
        def rdo(n):
            o = (n >> 1)*28*128 + (n & 1)*2048
            return [f'ds_read_b64_tr_b16 v[{fw[n&1][f]+2*sec}:{fw[n&1][f]+2*sec+1}], v{vWa[1][f]} offset:{o + sec*1024}' for f in range(2) for sec in range(2)]
        for x in rdo(0): A(x)
        nd = 0
        for n in range(16):
            R = rdo(n+1) if n < 15 else []
            z = '0' if n == 0 else None
            A(mfma32(sac[0], fw[n&1][0], ar(4*n, 4), z))
            for x in R[:2]: A(x)
            dma4(nd); nd += 1
            A(mfma32(sac[1], fw[n&1][1], ar(4*n, 4), z))
            for x in R[2:]: A(x)
            if nd < 24 and n % 2 == 0: dma4(nd); nd += 1
        assert nd == 24
        A.wait(lg=0); A.barrier()
        vEx = V.get(); vEr = V.get()
        A(f's_lshl_b32 s{sT}, s{sW}, 12\n s_add_u32 s{sT}, s{sT}, {WOFF}\n v_add_u32 v{vEx}, s{sT}, v{vL16}\n v_xor_b32 v{vEr}, 0x2000, v{vEx}')
        assert WOFF % 16384 == 0
        for i in range(4): A(f'ds_write_b128 v{vEx}, v[{sac[1]+4*i}:{sac[1]+4*i+3}] offset:{i*1024}')
        A.wait(lg=0); A.barrier()
        for i in range(4): A(f'ds_read_b128 v[{sac[1]+4*i}:{sac[1]+4*i+3}], v{vEr} offset:{i*1024}')
        xr = V.get(8, 4); x1r = V.get(8, 4); vXo = V.get()
        A(f'v_mul_u32_u24 v{vXo}, 896, v{vT31}\n v_lshl_add_u32 v{vXo}, v{vH}, 4, v{vXo}')
        A(f's_mul_i32 s{sXo}, s{sTile}, {32*896}\n s_lshl_b32 s{sT}, s{sCG}, 7\n s_add_u32 s{sXo}, s{sXo}, s{sT}\n s_lshl_b32 s{sT}, s{sKH}, 6\n s_add_u32 s{sXo}, s{sXo}, s{sT}')
        for i in range(0, 16, 2): A(pk('v_pk_add_f32', sac[0]+i, sac[0]+i, sac[1]+i))
        A.barrier()
        while nd < NSL: dma4(nd); nd += 1
        for i in range(2): A(f'buffer_load_dwordx4 v[{xr+4*i}:{xr+4*i+3}], v{vXo}, s[4:7], s{sXo} offen offset:{32*i}')
        A(f's_mul_i32 s{sA}, s{sTile}, {112*1024}\n s_mul_i32 s{sT}, s{sKH}, {56*1024}\n s_add_u32 s{sA}, s{sA}, s{sT}\n s_add_u32 s{sA}, s{sA}, {H3_OFF}')
        def idx(d): A(f's_lshr_b32 s{sT2}, s{sTG}, 1\n s_lshl_b32 s{sT2}, s{sT2}, 4\n v_add_u32 v{d}, s{sT2}, v{vl}')
        self.stamp(12)
        self.poll(2, 16, idx)
        self.stamp(13)
        def ld(n):
            if n and n % 4 == 0: A(f's_add_u32 s{sA}, s{sA}, 4096')
            A(f'buffer_load_dwordx4 a[{4*n}:{4*n+3}], v{vL16}, s[12:15], s{sA} offen offset:{(n%4)*1024} {SC}')
        def rd(n):
            sl = n % NSL
            i, o = (0, sl*2048) if sl < 24 else (1, (sl-24)*2048)
            return [f'ds_read_b64_tr_b16 v[{fw[n&1][f]+2*sec}:{fw[n&1][f]+2*sec+1}], v{vWa[i][f]} offset:{o + sec*1024}' for f in range(2) for sec in range(2)]
        D = 12
        for n in range(D): ld(n)
        for x in rd(0): A(x)
        for n in range(56):
            if n + 1 == NSL:
                A.wait_tag(('w4', 55)); A.barrier()
            R = rd(n+1) if n < 55 else []
            z = '0' if n == 0 else None
            A(mfma32(acc[0], fw[n&1][0], ar(4*n, 4), z))
            for x in R[:2]: A(x)
            A(mfma32(acc[1], fw[n&1][1], ar(4*n, 4), z))
            for x in R[2:]: A(x)
            if n + D < 56: ld(n + D)
            if n == 18: A.barrier()
            if 18 <= n and nd < 56:
                dma4(nd); nd += 1
                if nd < 56 and n % 4 == 0: dma4(nd); nd += 1
            if n == 44:
                A(f's_mul_i32 s{sT}, s{sTile}, {28*1024}\n s_lshl_b32 s{sT2}, s{sCG}, 12\n s_add_u32 s{sT}, s{sT}, s{sT2}\n s_lshl_b32 s{sT2}, s{sKH}, 11\n s_add_u32 s{sT}, s{sT}, s{sT2}\n s_add_u32 s{sT}, s{sT}, {X1_OFF}')
                for i in range(2): A(f'buffer_load_dwordx4 v[{x1r+4*i}:{x1r+4*i+3}], v{vL16}, s[12:15], s{sT} offen offset:{i*1024} {SC}')
        assert nd == 56
        self.stamp(14)
        for i in range(4): A(f'ds_write_b128 v{vEx}, v[{acc[1]+4*i}:{acc[1]+4*i+3}] offset:{i*1024}')
        xf = V.get(16); y = V.get(16); e = sac[1]; cc = V.get(2)
        unpack_x_tile(A, xr, xf); unpack16(A, x1r, y)
        A.wait(lg=0); A.barrier()
        for i in range(4): A(f'ds_read_b128 v[{acc[1]+4*i}:{acc[1]+4*i+3}], v{vEr} offset:{i*1024}')
        A(f'v_mov_b32 v{cc}, {fl(-LOG2E)}\n v_mov_b32 v{cc+1}, 1.0')
        for i in range(0, 16, 2): A(pk('v_pk_add_f32', y+i, y+i, acc[0]+i))
        for i in range(0, 16, 2): A(pk('v_pk_add_f32', y+i, y+i, acc[1]+i))
        for i in range(0, 16, 2): A(pk('v_pk_mul_f32', e+i, y+i, cc, selhi=[1,0]))
        for i in range(16): A(f'v_exp_f32 v{e+i}, v{e+i}')
        for i in range(0, 16, 2): A(pk('v_pk_add_f32', e+i, e+i, cc, sel=[0,1], selhi=[1,1]))
        for i in range(16): A(f'v_rcp_f32 v{e+i}, v{e+i}')
        for i in range(0, 16, 2): A(pk('v_pk_mul_f32', y+i, y+i, e+i))
        for i in range(0, 16, 2): A(pk('v_pk_fma_f32', y+i, y+i, sac[0]+i, xf+i))
        for i in range(8): A(f'v_cvt_pk_bf16_f32 v{xr+i}, v{y+2*i}, v{y+2*i+1}')
        for j in range(2):
            A(f'v_permlane32_swap_b32 v{xr+4*j}, v{xr+4*j+2}\n v_permlane32_swap_b32 v{xr+4*j+1}, v{xr+4*j+3}')
            A(f'buffer_store_dwordx4 v[{xr+4*j}:{xr+4*j+3}], v{vXo}, s[20:23], s{sXo} offen offset:{32*j}')
        A.raw(f'{lend}:')
        A('s_nop 1')
        self.stamp_flush()

def build(path, as_list=False):
    G = Gen(); G.build(); A = G.A
    out = header()
    if as_list: out.append(f"; @launch kernel={KN} grid=(256,1,1) block=(256,1,1) lds={LDS_BYTES}")
    else: out.append(f"; @launch grid=(256,1,1) block=(256,1,1) lds={LDS_BYTES}")
    out.append('.amdgcn_target "amdgcn-amd-amdhsa--gfx950"\n.text')
    out.append(A.text())
    out.append('.section .rodata,"a"')
    vg = A.maxv + 1; ao = (vg + 3) // 4 * 4
    out.append(f""".p2align 6
.amdhsa_kernel {KN}
  .amdhsa_next_free_vgpr {ao + A.maxa + 1}
  .amdhsa_next_free_sgpr {A.maxs + 1}
  .amdhsa_accum_offset {ao}
  .amdhsa_group_segment_fixed_size 0
  .amdhsa_kernarg_size 96
  .amdhsa_user_sgpr_count 2
  .amdhsa_user_sgpr_kernarg_segment_ptr 1
  .amdhsa_system_sgpr_workgroup_id_x 1
.end_amdhsa_kernel""")
    open(path, 'w').write('\n'.join(out) + '\n')
    print(path, 'vgpr', vg, 'agpr', A.maxa+1, 'sgpr', A.maxs+1, 'nops', A.nops, 'lines', len(A.out))

if __name__ == '__main__':
    Opt.x = ' '.join(sys.argv[1:])
    Opt.stamps = False
    build(f'cdna_kernels/{NAME}.s')
    Opt.stamps = True
    build('dbg2.s', as_list=True)
```

```python
import sys, struct, json
from emit import *
from gen import (NAME, HS_OFF, KVP_OFF, X1_OFF, ST2_OFF, O_OFF, H3_OFF, STAMP_OFF, WS_SIZE, LOG2E, fl, GELU_C1,
                 pk, xhalf, softmax_pair, gelu_pack, mfma32, mfma16, ones_mask_frag, w224_dma_off, EXEC56, EXEC64,
                 corr_xfrag, corr_wfrag, w128_dma_off, w128_read_addr, unpack_x_tile, unpack16, header)
ST1_OFF = 0x600000
FLAG_OFF = 0x610000
KVF_OFF = 0x200000
SC = 'sc1'
SPIN_MAX = 200000
OOB = '0x7fff0000'

class Opt:
    stamps = False
    x = ''

KN = NAME + '_kernel'
SRD_X, SRD_W, SRD_WS, SRD_P, SRD_Q, SRD_R = 4, 8, 12, 16, 20, 24
sW, sXcd, sLoc, sNonce, sT, sT2, sT3, sSpin = 3, 28, 29, 30, 31, 32, 33, 34
S0 = 35
PTR = 60
def ptr(i): return PTR + 2*i
STAMP0 = 84
sB3, sM3, sBo, sMo, sRGA, sHP = 86, 87, 88, 89, 90, 91
LDS_BYTES = 163840
R2 = 448*224
EXL = R2 + 456*128

class Weave:
    def __init__(self): self.l = []
    def __call__(self, text, tag=None):
        for line in text.strip().split('\n'):
            line = line.strip()
            if line: self.l.append(line)

class Gen:
    NAMES = ['start','s1first','s1main','s1epi','s1pub','s2go','s2main','s2epi','s2pub','s3go','s3main','s3epi','s4pre','s4go','s4main','end']
    def __init__(self):
        self.A = Asm(); self.uid = 0; self.names = list(self.NAMES)
    def lab(self, s):
        self.uid += 1; return f'.L{s}{self.uid}'
    def stamp(self, i):
        if not Opt.stamps: return
        if isinstance(i, str):
            if 'fine' not in Opt.x: return
            if i not in self.names: self.names.append(i)
            i = self.names.index(i)
        A = self.A
        A(f's_memrealtime s[{STAMP0}:{STAMP0+1}]')
        A(f'v_writelane_b32 v{self.vStamp}, s{STAMP0}, {i}')
    def stamp_flush(self):
        if not Opt.stamps: return
        A = self.A
        self.stamp(15)
        A(f's_lshl_b32 s{sT}, s2, 2\n s_add_u32 s{sT}, s{sT}, s{sW}\n s_lshl_b32 s{sT}, s{sT}, 8\n s_add_u32 s{sT}, s{sT}, {STAMP_OFF}')
        A(f'v_lshlrev_b32 v{self.t}, 2, v{self.vl}')
        A(f'buffer_store_dword v{self.vStamp}, v{self.t}, s[12:15], s{sT} offen')
        json.dump(self.names, open('stamps.json', 'w'))
    def set_srd(self, b, i, size):
        self.A(f's_mov_b32 s{b}, s{ptr(i)}\n s_mov_b32 s{b+1}, s{ptr(i)+1}\n s_mov_b32 s{b+2}, {hex(size)}\n s_mov_b32 s{b+3}, 0x00020000')
    def junk_load(self, text):
        self.A(text, tag='pf'); self.A.st.vm[-1] = (set(), 'pf')
    def weave(self, Wv, jobs, lead=1, tail=2):
        A = self.A; n = len(jobs)
        step = max(1, len(Wv.l) // (n + lead + tail)) if n else 1 << 30
        k = 0
        for i, x in enumerate(Wv.l):
            A(x, tag='st' if 'buffer_store' in x else None)
            if k < n and i % step == step - 1 and i // step >= lead - 1 and 'exec' not in x and not self._exec_open(Wv.l, i):
                jobs[k](); k += 1
        while k < n: jobs[k](); k += 1
    def _exec_open(self, l, i):
        for x in reversed(l[:i+1]):
            if 'exec' in x: return x != 's_mov_b64 exec, -1'
        return False

    def spin(self, load, cmp_, sleep=0):
        A = self.A
        A.wait(vm=0, lg=0)
        l = self.lab('spin'); d = self.lab('spun')
        A(f's_mov_b32 s{sSpin}, 0')
        A.raw(f'{l}:')
        if sleep: A(f's_sleep {sleep}')
        A(load); A(f's_add_u32 s{sSpin}, s{sSpin}, 1'); A.wait(vm=0)
        A(cmp_)
        A(f's_cmp_ge_u32 s{sSpin}, {SPIN_MAX}')
        A(f's_cbranch_scc1 {d}')
        A(f's_cbranch_vccnz {l}')
        A.raw(f'{d}:')
        A('s_nop 1')
    def nonce_begin(self):
        A = self.A; t = self.t
        self.set_srd(SRD_P, 10, 256)
        A(f'v_mov_b32 v{t+7}, 0')
        A(f'buffer_load_dword v{self.vN}, v{t+7}, s[16:19], 0 offen {SC}')
        A(f's_lshl_b32 s{sT}, s{sW}, 8\n s_add_u32 s{sT}, s{sT}, s2\n s_lshl_b32 s{sT}, s{sT}, 7\n s_add_u32 s{sT}, s{sT}, {FLAG_OFF}')
        self.junk_load(f'buffer_load_dword v{self.vJunk}, v{t+7}, s[12:15], s{sT} offen')
    def nonce_end(self):
        A = self.A; t = self.t; vN = self.vN
        A(f'v_readfirstlane_b32 s{sNonce}, v{vN}')
        l = self.lab('nonce')
        A(f's_cmp_lg_u32 s{sNonce}, 0'); A(f's_cbranch_scc1 {l}')
        sv = list(A.st.vm); sl = list(A.st.lg)
        A(f'v_mov_b32 v{t+7}, 0')
        self.spin(f'buffer_load_dword v{vN}, v{t+7}, s[16:19], 0 offen {SC}', f'v_cmp_eq_u32 vcc, 0, v{vN}')
        A(f'v_readfirstlane_b32 s{sNonce}, v{vN}\n s_nop 3')
        A.st.vm = sv; A.st.lg = sl
        A.raw(f'{l}:')
    def publish(self, stage, sIdx, tag=None):
        A = self.A; t = self.t
        if tag is None: A.wait(vm=0)
        else: A.wait_tag(tag)
        A.wait(lg=0)
        A.barrier()
        l = self.lab('pub')
        sv = list(A.st.vm)
        A(f's_cmp_lg_u32 s{sW}, 0'); A(f's_cbranch_scc1 {l}')
        A(f's_lshl_b32 s{sT}, s{sIdx}, 7\n s_add_u32 s{sT}, s{sT}, {FLAG_OFF + stage*0x8000}')
        A(f'v_mov_b32 v{t+6}, s{sNonce}\n v_mov_b32 v{t+7}, 0\n s_mov_b64 exec, 1')
        A(f'buffer_store_dword v{t+6}, v{t+7}, s[12:15], s{sT} offen {SC}')
        A('s_mov_b64 exec, -1')
        A.st.vm = sv
        A.raw(f'{l}:')
    def poll_begin(self, stage, nlanes, idx_code):
        A = self.A; V = self.V; t = self.t
        vo = V.get(); vd = V.get()
        idx_code(t+4)
        A(f'v_lshlrev_b32 v{t+4}, 7, v{t+4}\n v_add_u32 v{t+4}, {FLAG_OFF + stage*0x8000}, v{t+4}')
        A(f'v_cmp_gt_u32 vcc, {nlanes}, v0\n v_mov_b32 v{vo}, {OOB}\n v_cndmask_b32 v{vo}, v{vo}, v{t+4}, vcc')
        ld = f'buffer_load_dword v{vd}, v{vo}, s[12:15], 0 offen {SC}'
        A(ld)
        return (vo, vd, nlanes, ld)
    def poll_end(self, h, barrier=True, sleep=0):
        A = self.A
        vo, vd, nlanes, ld = h
        l = self.lab('poll'); l2 = self.lab('pollx')
        A.wait(lg=0)
        sv = list(A.st.vm)
        A(f's_cmp_lg_u32 s{sW}, 0'); A(f's_cbranch_scc1 {l}')
        A(f's_mov_b64 exec, {hex((1 << nlanes) - 1)}')
        cmp_ = f'v_cmp_ne_u32 vcc, s{sNonce}, v{vd}'
        A(cmp_); A('s_nop 1')
        A(f's_cbranch_vccz {l2}')
        self.spin(ld, cmp_, sleep)
        A.raw(f'{l2}:')
        A('s_mov_b64 exec, -1')
        A.raw(f'{l}:')
        A.st.vm = [(e[0] - {('v', vd)}, e[1]) for e in sv]
        if barrier: A.barrier()
        self.V.free(vo)

    def setup_w3_wo(self):
        A, t, vl = self.A, self.t, self.vl
        self.set_srd(SRD_W, 7, 448*3584)
        A(f's_mov_b32 s{sT}, 3584\n s_and_b32 s{sT2}, s{sLoc}, 15\n s_mul_i32 s{sT2}, s{sT2}, 224')
        w224_dma_off(A, self.vW3, vl, t, sT, sT2, sT2)
        A(f's_mul_i32 s{sB3}, s{sW}, {112*3584}\n s_mul_i32 s{sM3}, s{sW}, {28*896}')
    def dma3(self, i, ex=True):
        A = self.A
        A(f's_add_u32 m0, s{sM3}, {i*896}\n s_add_u32 s{sT3}, s{sB3}, {(8*(i>>1) + 2*(i&1))*3584}')
        if ex: A(EXEC56)
        A(f'buffer_load_dwordx4 v{self.vW3}, s[8:11], s{sT3} offen lds', tag='w3')
        if ex: A(EXEC64)
    def setup_r2(self, iptr, col_code):
        A = self.A
        self.set_srd(SRD_Q, iptr, 448*896)
        A(col_code)
        A(f's_lshl_b32 s{sT}, s{sT}, 7\n s_mul_i32 s{sBo}, s{sW}, {112*896}\n s_add_u32 s{sBo}, s{sBo}, s{sT}')
        A(f's_mul_i32 s{sMo}, s{sW}, {14*1024}\n s_add_u32 s{sMo}, s{sMo}, {R2}')
    def dma_r2(self, i):
        A = self.A
        A(f's_add_u32 m0, s{sMo}, {i*1024}\n s_add_u32 s{sT3}, s{sBo}, {i*8*896}')
        A(f'buffer_load_dwordx4 v{self.vW128}, s[20:23], s{sT3} offen lds', tag='r2')
    def zero_pad_rows(self):
        A, t = self.A, self.t
        A(f'v_mov_b32 v{t}, 0\n v_lshlrev_b32 v{t+1}, 2, v0\n v_add_u32 v{t+1}, {R2 + 448*128}, v{t+1}\n ds_write_b32 v{t+1}, v{t}')
    def common_regs(self):
        A, t, vl = self.A, self.t, self.vl
        A(f'v_lshlrev_b32 v{self.vL16}, 4, v{vl}\n v_and_b32 v{self.vT31}, 31, v{vl}\n v_lshrrev_b32 v{self.vH}, 5, v{vl}')
        self.set_srd(SRD_WS, 11, WS_SIZE)

    def build(self):
        A = self.A
        A.new_kernel(KN)
        A(f's_load_dwordx16 s[{PTR}:{PTR+15}], s[0:1], 0\n s_load_dwordx8 s[{PTR+16}:{PTR+23}], s[0:1], 64')
        A('s_cmp_ge_u32 s2, 256')
        A(f's_cbranch_scc1 {KN}_done')
        V = self.V = Alloc(1)
        self.vl = vl = V.get(); self.t = t = V.get(8, 4); self.vJunk = V.get()
        self.vL16 = V.get(); self.vT31 = V.get(); self.vH = V.get()
        self.vW128 = V.get(); self.vW3 = V.get(); self.vN = V.get()
        self.phq = V.get(32)
        A(f'v_lshrrev_b32 v{t+1}, 6, v0\n v_and_b32 v{vl}, 63, v0\n v_readfirstlane_b32 s{sW}, v{t+1}')
        A(f's_lshr_b32 s{sLoc}, s2, 3')
        A('s_getpc_b64 s[24:25]'); A.raw('.Lpc0:')
        A(f's_mov_b32 s26, {KN}_end-.Lpc0\n s_mov_b32 s27, 0x00020000\n s_lshl_b32 s{sT}, s{sLoc}, 11')
        A(f'v_lshlrev_b32 v{t}, 7, v0\n v_cmp_gt_u32 vcc, 16, v0\n v_mov_b32 v{t+1}, {OOB}\n s_and_b32 s{sXcd}, s2, 7\n v_cndmask_b32 v{t}, v{t+1}, v{t}, vcc')
        self.junk_load(f'buffer_load_dword v{self.vJunk}, v{t}, s[24:27], s{sT} offen')
        if Opt.stamps:
            self.vStamp = V.get(); A(f'v_mov_b32 v{self.vStamp}, 0')
        self.stamp(0)
        base = V.snap()
        la, ls, l3 = self.lab('teamA'), self.lab('spare'), self.lab('s3')
        A(f's_cmp_ge_u32 s{sLoc}, 14'); A.branch('s_cbranch_scc1', la)
        self.team_b(); A(f's_branch {l3}')
        A.label(la, False); V.restore(base)
        A(f's_cmp_ge_u32 s{sLoc}, 30'); A.branch('s_cbranch_scc1', ls)
        self.team_a(); A(f's_branch {l3}')
        A.label(ls, False); V.restore(base)
        self.team_s()
        A.raw(f'{l3}:'); A('s_nop 1')
        A.st.vm = []; A.st.lg = []
        self.stamp(8)
        V.restore(base); self.s34()
        A.raw(f'{KN}_done:')
        A('s_endpgm')
        A.raw(f'{KN}_end:')

    def team_b(self):
        A, V, vl, t, vT31, vH, vL16 = self.A, self.V, self.vl, self.t, self.vT31, self.vH, self.vL16
        W1L = 65536
        sRG, sCG, sC, sXb, sXc, sWc, sWb, sMx, sMw, sTile, sId, sA, sB = range(S0, S0+13)
        A(f's_and_b32 s{sT}, s{sLoc}, 1\n s_lshl_b32 s{sRG}, s{sXcd}, 1\n s_add_u32 s{sRG}, s{sRG}, s{sT}\n s_lshr_b32 s{sCG}, s{sLoc}, 1')
        A(f's_add_u32 s{sC}, s{sCG}, 1\n s_cmp_eq_u32 s{sC}, 7\n s_cselect_b32 s{sC}, 0, s{sC}')
        A(f's_lshl_b32 s{sTile}, s{sRG}, 2\n s_add_u32 s{sTile}, s{sTile}, s{sW}\n s_mul_i32 s{sXb}, s{sTile}, {32*896}\n s_lshl_b32 s{sMx}, s{sW}, 14')
        vXo = [V.get(), V.get()]
        A(f'v_lshrrev_b32 v{t}, 3, v{vl}\n v_mul_u32_u24 v{t}, 896, v{t}\n v_lshrrev_b32 v{t+1}, 4, v{vl}\n v_and_b32 v{t+2}, 7, v{vl}\n v_xor_b32 v{t+1}, v{t+1}, v{t+2}')
        A(f'v_lshl_add_u32 v{vXo[0]}, v{t+1}, 4, v{t}\n v_xor_b32 v{vXo[1]}, 64, v{vXo[0]}')
        self.set_srd(SRD_X, 0, 2048*896)
        def dma_x(ci, i):
            A(f's_add_u32 m0, s{sMx}, {(ci % 4)*4096 + i*1024}')
            if i == 0: A(f's_lshl_b32 s{sXc}, s{sC}, 7\n s_add_u32 s{sXc}, s{sXc}, s{sXb}')
            else: A(f's_add_u32 s{sXc}, s{sXc}, {8*896}')
            A(f'buffer_load_dwordx4 v{vXo[i&1]}, s[4:7], s{sXc} offen lds', tag=('c', ci))
        def dma_w(ci, i):
            A(f's_add_u32 m0, s{sMw}, {ci*8192 + i*1024}')
            if i == 0: A(f's_mul_i32 s{sWc}, s{sC}, {64*896}\n s_add_u32 s{sWc}, s{sWc}, s{sWb}')
            else: A(f's_add_u32 s{sWc}, s{sWc}, {8*896}')
            A(f'buffer_load_dwordx4 v{self.vW128}, s[8:11], s{sWc} offen lds', tag=('c', ci))
            if i == 1: A(f's_add_u32 s{sC}, s{sC}, 1\n s_cmp_eq_u32 s{sC}, 7\n s_cselect_b32 s{sC}, 0, s{sC}')
        def jobs(ci): return [lambda i=i: dma_x(ci, i) for i in range(4)] + [lambda i=i: dma_w(ci, i) for i in range(2)]
        for i in range(4): dma_x(0, i)
        A(f's_mov_b32 s{sT}, 0'); w128_dma_off(A, self.vW128, vl, t, sT)
        self.set_srd(SRD_W, 5, 448*896)
        A(f's_mul_i32 s{sWb}, s{sW}, {16*896}\n s_lshl_b32 s{sT}, s{sCG}, 7\n s_add_u32 s{sWb}, s{sWb}, s{sT}\n s_lshl_b32 s{sMw}, s{sW}, 11\n s_add_u32 s{sMw}, s{sMw}, {W1L}')
        for i in range(2): dma_w(0, i)
        l = self.lab('lead')
        A(f's_or_b32 s{sT}, s2, s{sW}\n s_cmp_lg_u32 s{sT}, 0'); A(f's_cbranch_scc1 {l}')
        sv = list(A.st.vm)
        self.set_srd(SRD_P, 10, 256)
        A(f's_memrealtime s[24:25]\n s_or_b32 s{sT}, s24, 1\n v_mov_b32 v{t+2}, s{sT}\n v_mov_b32 v{t+1}, 0\n s_mov_b64 exec, 1')
        A(f'buffer_store_dword v{t+2}, v{t+1}, s[16:19], 0 offen {SC}\n s_mov_b64 exec, -1')
        A.st.vm = sv
        A.raw(f'{l}:')
        for j in jobs(1): j()
        self.common_regs()
        vXa = [V.get() for s in range(4)]; vWa = [V.get(), V.get()]; vCa = [V.get(), V.get()]
        A(f'v_bfe_u32 v{t}, v{vl}, 1, 3\n v_xor_b32 v{t}, v{t}, v{vH}\n v_lshlrev_b32 v{t+1}, 7, v{vT31}\n v_add_u32 v{t+1}, s{sMx}, v{t+1}')
        for s in range(4): A(f'v_xor_b32 v{t+2}, {2*s}, v{t}\n v_lshl_add_u32 v{vXa[s]}, v{t+2}, 4, v{t+1}')
        vR = V.get()
        w128_read_addr(A, vR, vl, t)
        A(f'v_lshl_add_u32 v{vWa[0]}, v{vH}, 9, v{vR}\n v_add_u32 v{vWa[0]}, {W1L}, v{vWa[0]}\n v_xor_b32 v{vWa[1]}, 64, v{vWa[0]}')
        A(f's_lshl_b32 s{sT}, s{sW}, 11\n v_add_u32 v{vCa[0]}, s{sT}, v{vWa[0]}\n v_add_u32 v{vCa[1]}, s{sT}, v{vWa[1]}')
        vOnes = V.get(4); ones_mask_frag(A, vOnes, vl, t)
        self.zero_pad_rows()
        A(f's_lshl_b32 s{sId}, s{sRG}, 3\n s_add_u32 s{sId}, s{sId}, s{sCG}')
        for j in jobs(2): j()
        acc = [V.get(16) for f in range(2)]; cs = [V.get(4) for f in range(2)]
        fx = [V.get(16) for b in range(2)]
        fw = [[V.get(16) for f in range(2)] for b in range(2)]
        fc = [[V.get(4) for f in range(2)] for b in range(2)]
        sq = V.get(4)
        sOne = sA
        A(f's_mov_b32 s{sOne}, 0x3f803f80')
        def rd(ci):
            b = ci & 1; out = []
            for s in range(4):
                out.append(f'ds_read_b128 v[{fx[b]+4*s}:{fx[b]+4*s+3}], v{vXa[s]} offset:{(ci % 4)*4096}')
                for f in range(2):
                    for sec in range(2):
                        out.append(f'ds_read_b64_tr_b16 v[{fw[b][f]+4*s+2*sec}:{fw[b][f]+4*s+2*sec+1}], v{vWa[f]} offset:{ci*8192 + s*2048 + sec*512}')
            for f in range(2):
                for sec in range(2):
                    out.append(f'ds_read_b64_tr_b16 v[{fc[b][f]+2*sec}:{fc[b][f]+2*sec+1}], v{vCa[f]} offset:{ci*8192 + sec*512}')
            return out
        A.wait_tag(('c', 0)); A.wait(lg=0); A.barrier()
        self.stamp(1)
        for x in rd(0): A(x)
        for ci in range(7):
            b = ci & 1; z = '0' if ci == 0 else None
            self.stamp(f'b1_{ci}')
            for d in range(16):
                x = fx[b] + d; k = d & 1; first = ci == 0 and d < 2
                A(f'v_dot2_f32_bf16 v{sq+k}, v{x}, s{sOne}, ' + ('0' if first else f'v{sq+k}'))
                A(f'v_dot2_f32_bf16 v{sq+2+k}, v{x}, v{x}, ' + ('0' if first else f'v{sq+2+k}'))
            R = []; J = []
            if ci + 1 < 7:
                A.wait(lg=0); A.wait_tag(('c', ci+1)); A.barrier(); R = rd(ci+1)
            if ci + 3 < 7: J = jobs(ci+3)
            if ci == 4: J = [self.nonce_begin]
            k = 0
            for s in range(4):
                for f in range(2):
                    A(mfma32(acc[f], fw[b][f]+4*s, fx[b]+4*s, z if s == 0 else None))
                    for x in R[3*k:3*k+3]: A(x)
                    if k < len(J): J[k]()
                    k += 1
            for f in range(2): A(mfma16(cs[f], vOnes, fc[b][f], z))
        self.stamp(2)
        A(f'v_mov_b32 v{cs[0]+1}, v{cs[1]}')
        A(f'v_lshlrev_b32 v{t}, 3, v0\n v_add_u32 v{t}, {EXL}, v{t}\n ds_write_b64 v{t}, v[{cs[0]}:{cs[0]+1}]')
        A(f'v_add_f32 v{sq}, v{sq}, v{sq+1}\n v_add_f32 v{sq+1}, v{sq+2}, v{sq+3}')
        xhalf(A, 'v_add_f32', sq, t+1); xhalf(A, 'v_add_f32', sq+1, t+2)
        A(f'v_lshlrev_b32 v{t}, 3, v{vl}\n v_add_u32 v{t}, {EXL}, v{t}')
        A.wait(lg=0); A.barrier()
        ex = fw[1][0]
        for w in range(4): A(f'ds_read_b64 v[{ex+2*w}:{ex+2*w+1}], v{t} offset:{w*512}')
        self.setup_r2(6, f's_mov_b32 s{sT}, s{sCG}')
        A(f's_mov_b32 s{sT}, {fl(1.0/448)}')
        vm, vvar, vr_, vmr = sq, sq+1, sq+3, sq+2
        A(f'v_mul_f32 v{vm}, s{sT}, v{sq}\n v_mul_f32 v{vvar}, s{sT}, v{sq+1}\n v_fma_f32 v{vvar}, -v{vm}, v{vm}, v{vvar}\n v_max_f32 v{vvar}, 0, v{vvar}')
        cx = fw[1][1]; cw = [fw[1][1]+4, fw[1][1]+8]
        corr_xfrag(A, cx, vm, None, t+1)
        A(pk('v_pk_add_f32', ex, ex, ex+2)); A(pk('v_pk_add_f32', ex+4, ex+4, ex+6)); A(pk('v_pk_add_f32', ex, ex, ex+4))
        A('s_mov_b32 s56, -1\n s_mov_b32 s57, 0')
        for f in range(2): corr_wfrag(A, cw[f], ex+f, t+1, 's[56:57]')
        for f in range(2): A(mfma32(acc[f], cw[f], cx))
        kk = V.get(2); inv = V.get(2)
        A(f'v_add_f32 v{t}, {fl(1e-5)}, v{vvar}\n v_rsq_f32 v{vr_}, v{t}\n v_mov_b32 v{t+1}, {fl(1e-5)}\n v_mul_f32 v{t}, v{vr_}, v{vr_}\n v_fma_f32 v{t}, v{t}, v{vvar}, v{t+1}')
        A(f'v_rsq_f32 v{t}, v{t}\n v_mul_f32 v{vmr}, v{vm}, v{vr_}\n v_mul_f32 v{t}, v{t}, v{vr_}')
        A(f'v_rcp_f32 v{inv}, v{t}\n v_mul_f32 v{kk}, {fl(GELU_C1)}, v{t}\n v_mul_f32 v{t+1}, v{t}, v{t}')
        A(f'v_mul_f32 v{t+1}, {fl(0.044715)}, v{t+1}\n v_mul_f32 v{kk+1}, v{t+1}, v{kk}')
        A(f's_lshl_b32 s{sT}, s{sTile}, 8\n s_add_u32 s{sT}, s{sT}, {ST1_OFF}\n v_lshlrev_b32 v{t}, 3, v{vT31}')
        A(f'buffer_store_dwordx2 v[{vm}:{vm+1}], v{t}, s[12:15], s{sT} offen {SC}', tag='st')
        vo = [V.get() for q in range(4)]
        mk = [48, 50, 52, 54]
        for q in range(4):
            A(f's_lshl_b32 s{sT}, s{sCG}, 2\n s_add_u32 s{sT}, s{sT}, {q}\n s_mul_i32 s{sT2}, s{sT}, 37\n s_lshr_b32 s{sT2}, s{sT2}, 8')
            A(f's_lshr_b32 s{sT3}, s{sT2}, 1\n s_add_u32 s{sT3}, s{sT3}, 1\n s_sub_u32 s{sA}, 0, s{sT3}\n s_bitcmp1_b32 s{sT2}, 0\n s_cselect_b32 s{sT3}, s{sA}, s{sT3}')
            A(f's_lshl_b32 s{sA}, s{sTile}, 5\n s_add_u32 s{sA}, s{sA}, s{sT3}\n s_lshl_b32 s{sT}, s{sT}, 10')
            A(f'v_add_u32 v{t}, s{sA}, v{vT31}\n v_mov_b32 v{t+2}, 2048')
            A(f'v_cmp_lt_u32 s[{mk[q]}:{mk[q]+1}], v{t}, v{t+2}')
            A(f'v_bfe_u32 v{t+1}, v{t}, 5, 6\n v_mul_u32_u24 v{t+1}, {28*1024}, v{t+1}\n v_add_u32 v{t+1}, s{sT}, v{t+1}')
            A(f'v_and_b32 v{t}, 31, v{t}\n v_lshl_add_u32 v{t}, v{vH}, 5, v{t}\n v_lshl_add_u32 v{vo[q]}, v{t}, 4, v{t+1}')
        assert HS_OFF == 0
        tt = fw[0][0]; ob = fw[0][1]
        Wv = Weave()
        for f in range(2):
            gelu_pack(Wv, acc[f], 16, kk, inv, tt, ob + 8*f)
            for i in range(2):
                q = 2*f + i
                for d in range(4): Wv(f'v_cndmask_b32 v{ob+4*q+d}, 0, v{ob+4*q+d}, s[{mk[q]}:{mk[q]+1}]')
                Wv(f'buffer_store_dwordx4 v[{ob+4*q}:{ob+4*q+3}], v{vo[q]}, s[12:15], 0 offen {SC}')
        NE = 8
        self.weave(Wv, [lambda i=i: self.dma_r2(i) for i in range(NE)], tail=3)
        self.stamp(3)
        for i in range(NE, 14): self.dma_r2(i)
        self.nonce_end()
        self.publish(0, sId, tag='st')
        self.stamp(4)
        def idx(d):
            A(f'v_mul_u32_u24 v{d+1}, 37, v{vl}\n v_lshrrev_b32 v{d+1}, 8, v{d+1}\n v_add_u32 v{d}, v{vl}, v{d+1}')
            A(f's_lshl_b32 s{sT2}, s{sRG}, 3\n s_sub_u32 s{sT2}, s{sT2}, 8\n v_add_u32 v{d}, s{sT2}, v{d}\n v_and_b32 v{d}, 127, v{d}')
        xf = self.phq
        for f in range(2): unpack_x_tile(A, fx[0] + 8*f, xf + 16*f)
        for i in range(0, 32, 2):
            A(pk('v_pk_fma_f32', xf+i, xf+i, vmr, vmr, sel=[0,1,0], selhi=[1,1,0], neg=[0,0,1]))
        self.setup_w3_wo()
        h = self.poll_begin(0, 21, idx)
        A(f'v_add_u32 v{vWa[0]}, {R2}, v{vR}\n v_xor_b32 v{vWa[1]}, 64, v{vWa[0]}')
        f2 = [[fw[1][0], fw[1][0]+4], [fw[1][0]+8, fw[1][0]+12], [fw[1][1], fw[1][1]+4]]
        def rd2(n): return [f'ds_read_b64_tr_b16 v[{f2[n%3][f]+2*sec}:{f2[n%3][f]+2*sec+1}], v{vWa[f]} offset:{n*2048 + sec*1024}' for f in range(2) for sec in range(2)]
        A(f's_mul_i32 s{sA}, s{sTile}, {28*1024}')
        A.wait_tag('r2')
        self.poll_end(h)
        self.stamp(5)
        def ld(n):
            if n and n % 4 == 0: A(f's_add_u32 s{sA}, s{sA}, 4096')
            A(f'buffer_load_dwordx4 a[{4*n}:{4*n+3}], v{vL16}, s[12:15], s{sA} offen offset:{(n%4)*1024} {SC}')
        D = 12
        for n in range(D): ld(n)
        for x in rd2(0) + rd2(1): A(x)
        n3 = 0
        for n in range(28):
            if n % 4 == 0: self.stamp(f'm2_{n}')
            R = rd2(n+2) if n + 2 < 28 else []
            z = '0' if n == 0 else None
            A(mfma32(acc[0], f2[n%3][0], ar(4*n, 4), z))
            for x in R[:2]: A(x)
            A(mfma32(acc[1], f2[n%3][1], ar(4*n, 4), z))
            for x in R[2:]: A(x)
            if n + D < 28: ld(n + D)
            elif 'w3late' not in Opt.x: self.dma3(n3); n3 += 1
        self.stamp(6)
        ob = fw[0][0]
        A(f's_mul_i32 s{sB}, s{sTile}, {28*1024}\n s_lshl_b32 s{sA}, s{sCG}, 12\n s_add_u32 s{sB}, s{sB}, s{sA}\n s_add_u32 s{sB}, s{sB}, {X1_OFF}')
        for f in range(2):
            for i in range(0, 16, 2): A(pk('v_pk_add_f32', xf+16*f+i, xf+16*f+i, acc[f]+i))
            for i in range(8): A(f'v_cvt_pk_bf16_f32 v{ob+8*f+i}, v{xf+16*f+2*i}, v{xf+16*f+2*i+1}')
            for i in range(2): A(f'buffer_store_dwordx4 v[{ob+8*f+4*i}:{ob+8*f+4*i+3}], v{vL16}, s[12:15], s{sB} offen offset:{(2*f+i)*1024} {SC}')
        A(pk('v_pk_add_f32', sq, xf, xf+2)); A(pk('v_pk_mul_f32', sq+2, xf, xf)); A(pk('v_pk_fma_f32', sq+2, xf+2, xf+2, sq+2))
        for i in range(4, 32, 2):
            A(pk('v_pk_add_f32', sq, sq, xf+i)); A(pk('v_pk_fma_f32', sq+2, xf+i, xf+i, sq+2))
        A(f'v_add_f32 v{sq}, v{sq}, v{sq+1}\n v_add_f32 v{sq+1}, v{sq+2}, v{sq+3}')
        A(f's_mul_i32 s{sT}, s{sTile}, 7\n s_add_u32 s{sT}, s{sT}, s{sCG}\n s_lshl_b32 s{sT}, s{sT}, 9\n s_add_u32 s{sT}, s{sT}, {ST2_OFF}')
        A(f'v_lshlrev_b32 v{t}, 3, v{vl}')
        A(f'buffer_store_dwordx2 v[{sq}:{sq+1}], v{t}, s[12:15], s{sT} offen {SC}', tag='st')
        self.stamp(7)
        A(EXEC56)
        for k in range(6): self.dma3(n3, False); n3 += 1
        A(EXEC64)
        self.publish(1, sId, tag='st')
        A(EXEC56)
        while n3 < 28: self.dma3(n3, False); n3 += 1
        A(EXEC64)
        self.setup_r2(3, f's_lshr_b32 s{sT}, s{sLoc}, 2')
        for i in range(14): self.dma_r2(i)
        A.wait_tag('w3'); A.barrier()

    def team_a(self):
        A, V, vl, t, vT31, vH, vL16 = self.A, self.V, self.vl, self.t, self.vT31, self.vH, self.vL16
        NS = 3
        WR = NS*16384; WCH = 3*7168
        PHL = WR + NS*WCH
        assert PHL + 8192 <= R2 + 448*128 and PHL % 16 == 0
        sTP, sJ, sC, sXb, sXc, sWc, sWb, sMx, sMw, sTile0, sId, sHead = range(S0, S0+12)
        A(f's_sub_u32 s{sT2}, s{sLoc}, 14\n s_and_b32 s{sT}, s{sT2}, 1\n s_lshl_b32 s{sRGA}, s{sXcd}, 1\n s_add_u32 s{sRGA}, s{sRGA}, s{sT}\n s_lshr_b32 s{sHP}, s{sT2}, 1')
        A(f's_add_u32 s{sC}, s{sHP}, s{sRGA}\n s_mul_i32 s{sT}, s{sC}, 37\n s_lshr_b32 s{sT}, s{sT}, 8\n s_mul_i32 s{sT}, s{sT}, 7\n s_sub_u32 s{sC}, s{sC}, s{sT}')
        A(f's_and_b32 s{sTP}, s{sW}, 1\n s_lshl_b32 s{sXb}, s{sRGA}, 4\n s_add_u32 s{sXb}, s{sXb}, s{sW}\n s_mul_i32 s{sXb}, s{sXb}, {8*896}\n s_lshl_b32 s{sMx}, s{sW}, 10')
        vXoff = V.get(); vWoff = V.get()
        A(f'v_lshrrev_b32 v{t}, 3, v{vl}\n v_mul_u32_u24 v{t}, 896, v{t}')
        A(f'v_lshrrev_b32 v{t+1}, 4, v{vl}\n s_lshl_b32 s{sT}, s{sTP}, 2\n v_or_b32 v{t+1}, s{sT}, v{t+1}')
        A(f'v_and_b32 v{t+2}, 7, v{vl}\n v_xor_b32 v{t+1}, v{t+1}, v{t+2}\n v_lshl_add_u32 v{vXoff}, v{t+1}, 4, v{t}')
        self.set_srd(SRD_X, 0, 2048*896)
        def dma_x(ci, i):
            A(f's_add_u32 m0, s{sMx}, {(ci % NS)*16384 + i*4096}')
            if i == 0: A(f's_lshl_b32 s{sXc}, s{sC}, 7\n s_add_u32 s{sXc}, s{sXc}, s{sXb}')
            else: A(f's_add_u32 s{sXc}, s{sXc}, {32*896}')
            A(f'buffer_load_dwordx4 v{vXoff}, s[4:7], s{sXc} offen lds', tag=('c', ci))
        def dma_w(ci, i, ex=True):
            seg, b = divmod(i, 2)
            A(f's_add_u32 m0, s{sMw}, {(ci % NS)*WCH + seg*7168 + b*896}')
            if i == 0: A(f's_mul_i32 s{sWc}, s{sC}, {64*2688}\n s_add_u32 s{sWc}, s{sWc}, s{sWb}')
            elif b: A(f's_add_u32 s{sWc}, s{sWc}, {2*2688}')
            else: A(f's_sub_u32 s{sWc}, s{sWc}, {2*2688 - 896}')
            if ex: A(EXEC56)
            A(f'buffer_load_dwordx4 v{vWoff}, s[8:11], s{sWc} offen lds', tag=('c', ci))
            if ex: A(EXEC64)
            if i == 5: A(f's_add_u32 s{sC}, s{sC}, 1\n s_cmp_eq_u32 s{sC}, 7\n s_cselect_b32 s{sC}, 0, s{sC}')
        for i in range(4): dma_x(0, i)
        A(f'v_mul_u32_u24 v{t}, 37, v{vl}\n v_lshrrev_b32 v{t}, 8, v{t}\n v_mul_u32_u24 v{t+1}, 7, v{t}\n v_sub_u32 v{t+1}, v{vl}, v{t+1}')
        A(f'v_and_b32 v{t+2}, 3, v{t}\n v_lshrrev_b32 v{t}, 2, v{t}\n v_lshl_add_u32 v{t}, v{t+2}, 2, v{t}\n v_mul_u32_u24 v{t}, 2688, v{t}\n v_lshl_add_u32 v{vWoff}, v{t+1}, 4, v{t}')
        self.set_srd(SRD_W, 1, 448*2688)
        A(f's_mul_i32 s{sWb}, s{sW}, {16*2688}\n s_mul_i32 s{sT}, s{sHP}, 112\n s_add_u32 s{sWb}, s{sWb}, s{sT}\n s_mul_i32 s{sMw}, s{sW}, 1792\n s_add_u32 s{sMw}, s{sMw}, {WR}')
        A(EXEC56)
        for i in range(6): dma_w(0, i, False)
        A(EXEC64)
        self.common_regs()
        A(f's_lshr_b32 s{sJ}, s{sW}, 1')
        vXa = [V.get() for s in range(4)]; vWa = V.get()
        A(f'v_bfe_u32 v{t}, v{vl}, 1, 3\n v_xor_b32 v{t}, v{t}, v{vH}')
        A(f's_lshl_b32 s{sTile0}, s{sRGA}, 2\n s_lshl_b32 s{sT}, s{sTP}, 1\n s_add_u32 s{sTile0}, s{sTile0}, s{sT}')
        A(f's_lshl_b32 s{sT}, s{sTP}, 13\n v_lshlrev_b32 v{t+1}, 7, v{vT31}\n v_add_u32 v{t+1}, s{sT}, v{t+1}')
        for s in range(4): A(f'v_xor_b32 v{t+2}, {2*s}, v{t}\n v_lshl_add_u32 v{vXa[s]}, v{t+2}, 4, v{t+1}')
        A(f'v_bfe_u32 v{t}, v{vl}, 2, 2\n v_lshl_add_u32 v{t}, v{t}, 1, v{vH}\n v_mul_u32_u24 v{t}, 224, v{t}\n v_add_u32 v{t}, {WR}, v{t}')
        A(f'v_bfe_u32 v{t+1}, v{vl}, 4, 1\n v_lshlrev_b32 v{t+1}, 5, v{t+1}\n v_and_b32 v{t+2}, 3, v{vl}\n v_lshl_add_u32 v{t+1}, v{t+2}, 3, v{t+1}')
        A(f's_mul_i32 s{sT}, s{sJ}, 56\n v_add_u32 v{t+2}, s{sT}, v{t+1}\n v_min_u32 v{t+2}, 104, v{t+2}\n v_add_u32 v{vWa}, v{t}, v{t+2}')
        vPa = V.get()
        A(f'v_bfe_u32 v{t}, v{vl}, 2, 2\n v_lshl_add_u32 v{t}, v{vH}, 2, v{t}\n v_mul_u32_u24 v{t}, 56, v{t}')
        A(f'v_cmp_eq_u32 vcc, 56, v{t+1}\n v_mov_b32 v{t+2}, {4096 + 48}\n s_mul_i32 s{sT}, s{sJ}, 1568\n s_add_u32 s{sT}, s{sT}, {PHL}\n v_cndmask_b32 v{t+1}, v{t+1}, v{t+2}, vcc')
        A(f'v_add3_u32 v{vPa}, v{t}, v{t+1}, s{sT}')
        for i in range(4): dma_x(1, i)
        A(EXEC56)
        for i in range(6): dma_w(1, i, False)
        A(EXEC64)
        vOnes = V.get(4); ones_mask_frag(A, vOnes, vl, t)
        self.zero_pad_rows()
        A(f's_mov_b32 s{sT}, 0'); w128_dma_off(A, self.vW128, vl, t, sT)
        A(f's_lshl_b32 s{sId}, s{sHP}, 4\n s_add_u32 s{sId}, s{sId}, s{sRGA}\n s_add_u32 s{sId}, s{sId}, 128')
        A(f's_lshl_b32 s{sHead}, s{sHP}, 1\n s_add_u32 s{sHead}, s{sHead}, s{sJ}')
        acc = [[V.get(16) for e in range(2)] for f in range(3)]
        cs = [V.get(4) for f in range(3)]
        fbuf = V.get(40)
        fx = [[fbuf + 20*b + 4*e for e in range(2)] for b in range(2)]
        fw = [[fbuf + 20*b + 8 + 4*f for f in range(3)] for b in range(2)]
        stg = V.get(4)
        def dma_phi(c):
            A(f's_mul_i32 s{sT3}, s{sHP}, 3136\n s_add_u32 s{sT3}, s{sT3}, s{sMx}\n s_add_u32 m0, s{sMx}, {PHL + c*4096}')
            if c: A(f's_add_u32 s{sT3}, s{sT3}, 4')
            A(f'buffer_load_dwordx4 v{vL16}, s[24:27], s{sT3} offen lds', tag='phi')
        def prefetch_w4():
            self.set_srd(SRD_Q, 8, 1792*896)
            A(f's_sub_u32 s{sT}, s2, 112\n s_lshl_b32 s{sT}, s{sT}, 2\n s_add_u32 s{sT}, s{sT}, s{sW}\n s_mul_i32 s{sT}, s{sT}, {25*128}')
            A(f'v_lshlrev_b32 v{t+6}, 7, v{vl}\n v_cmp_gt_u32 vcc, 25, v{vl}\n v_mov_b32 v{t+7}, {OOB}\n v_cndmask_b32 v{t+6}, v{t+7}, v{t+6}, vcc')
            self.junk_load(f'buffer_load_dword v{self.vJunk}, v{t+6}, s[20:23], s{sT} offen')
        def rd(n):
            ci, s = divmod(n, 4); slot = ci % NS; b = n & 1
            r = [f'ds_read_b128 v[{fx[b][e]}:{fx[b][e]+3}], v{vXa[s]} offset:{slot*16384 + e*4096}' for e in range(2)]
            w = [f'ds_read_b64_tr_b16 v[{fw[b][f]+2*sec}:{fw[b][f]+2*sec+1}], v{vWa} offset:{slot*WCH + f*7168 + s*1792 + sec*112}' for f in range(3) for sec in range(2)]
            return [w[0], w[1], r[0], r[1], w[2], w[3], w[4], w[5]]
        assert (NS-1)*WCH + 2*7168 + 3*1792 + 112 < 65536
        hs = {}
        def jobs(n):
            ci = n // 4 + 2; s = n % 4
            if ci <= 6:
                seq = [lambda i=i: dma_x(ci, i) for i in range(4)] + [lambda i=i: dma_w(ci, i) for i in range(6)]
                order = [0, 4, 5, 1, 6, 2, 7, 8, 3, 9]
                lo, hi = [0, 3, 5, 8, 10][s], [0, 3, 5, 8, 10][s+1]
                return [seq[o] for o in order[lo:hi]]
            if n == 20: return [lambda: self.set_srd(SRD_R, 2, 16*28*28*2), lambda: dma_phi(0), lambda: dma_phi(1)]
            if n == 21: return [self.nonce_begin]
            if n == 25:
                def pb():
                    self.nonce_end()
                    hs['h'] = self.poll_begin(0, 1, lambda d: A(f's_lshl_b32 s{sT2}, s{sRGA}, 3\n v_mov_b32 v{d}, s{sT2}'))
                return [pb]
            return []
        A.wait_tag(('c', 0)); A.wait(lg=0); A.barrier()
        self.stamp(1)
        for x in rd(0): A(x)
        for n in range(28):
            b = n & 1; z = '0' if n == 0 else None
            if n % 4 == 0 and n: self.stamp(f'a1_{n}')
            R = rd(n+1) if n + 1 < 28 else []
            J = jobs(n)
            bound = (n + 1) % 4 == 0 and n + 1 < 28
            k = 0
            for f in range(3):
                for e in range(2):
                    if f == 2: A(mfma32(acc[f][e], fx[b][e], fw[b][f], z))
                    else: A(mfma32(acc[f][e], fw[b][f], fx[b][e], z))
                    if e == 0 and f < len(J): J[f]()
                    if e == 1:
                        if bound and f == 0:
                            A.wait(lg=0); A.wait_tag(('c', (n+1)//4)); A.barrier()
                        for x in R[[0, 3, 6][f]:[3, 6, 8][f]]: A(x)
                A(mfma16(cs[f], vOnes, fw[b][f], z))
        self.stamp(2)
        A.wait_tag('phi')
        self.poll_end(hs['h'])
        A(f's_lshl_b32 s{sT}, s{sTile0}, 8\n s_add_u32 s{sT}, s{sT}, {ST1_OFF}\n v_lshlrev_b32 v{t}, 3, v{vT31}')
        for e in range(2): A(f'buffer_load_dwordx2 v[{stg+2*e}:{stg+2*e+1}], v{t}, s[12:15], s{sT} offen offset:{256*e} {SC}')
        prefetch_w4()
        V.free(vXa, vWa, vOnes, fbuf, vXoff, vWoff)
        wphi = V.get(8, 4)
        for i in range(4): A(f'ds_read_b64_tr_b16 v[{wphi+2*i}:{wphi+2*i+1}], v{vPa} offset:{i*8*56}')
        self.setup_w3_wo()
        A('s_mov_b32 s56, -1\n s_mov_b32 s57, 0\n s_mov_b32 s54, 0x0fffffff\n s_mov_b32 s55, 0')
        mLo, mLo28 = 's[56:57]', 's[54:55]'
        idf = V.get(8, 4); cx = [V.get(4) for e in range(2)]; cw = [V.get(4) for f in range(3)]
        st_r = [V.get(), V.get()]; st_sig = [V.get(), V.get()]
        X = Weave()
        X(f'v_bfe_u32 v{t}, v{vl}, 2, 1\n v_cmp_eq_u32 vcc, v{t}, v{vH}')
        X(f'v_and_b32 v{t}, 1, v{vl}\n v_lshlrev_b32 v{t}, 4, v{t}\n v_mov_b32 v{t+1}, 0x3f80\n v_lshlrev_b32 v{t+1}, v{t}, v{t+1}')
        X(f'v_cndmask_b32 v{t+1}, 0, v{t+1}, vcc')
        X(f'v_bfe_u32 v{t}, v{vl}, 1, 1\n v_bfe_u32 v{t+2}, v{vl}, 3, 2\n v_lshl_add_u32 v{t}, v{t+2}, 1, v{t}')
        for d in range(8): X(f'v_cmp_eq_u32 vcc, {d}, v{t}\n v_cndmask_b32 v{idf+d}, 0, v{t+1}, vcc')
        corr_wfrag(X, cw[0], cs[0], t, mLo); corr_wfrag(X, cw[1], cs[1], t, mLo); corr_wfrag(X, cw[2], cs[2], t, mLo28)
        X('s_mov_b32 exec_lo, 0x10000000\n s_mov_b32 exec_hi, 0')
        X(f'v_mov_b32 v{cw[2]+1}, 0x3f800000\n v_mov_b32 v{cw[2]+2}, 0x3f80')
        X('s_mov_b32 exec_lo, 0xf0000000\n s_mov_b32 exec_hi, 0xf0000000')
        for e in range(2):
            for r in range(16): X(f'v_mov_b32 v{acc[2][e]+r}, 0')
        X('s_mov_b64 exec, -1')
        X(f'v_cndmask_b32 v{wphi+6}, 0, v{wphi+6}, {mLo}\n v_cndmask_b32 v{wphi+7}, 0, v{wphi+7}, {mLo}')
        for e in range(2): X(f'v_add_f32 v{t+e}, {fl(1e-5)}, v{stg+2*e+1}\n v_rsq_f32 v{st_r[e]}, v{t+e}')
        for e in range(2): X(f'v_mul_f32 v{st_sig[e]}, v{t+e}, v{st_r[e]}')
        for e in range(2): corr_xfrag(X, cx[e], stg+2*e, st_sig[e], t)
        for e in range(2): X(mfma32(acc[1][e], cw[1], cx[e]))
        for e in range(2): X(mfma32(acc[2][e], cx[e], cw[2]))
        for e in range(2): X(mfma32(acc[0][e], cw[0], cx[e]))
        kb = [self.phq, self.phq + 8]; vb = [self.phq + 16, self.phq + 24]
        pkk = [V.get(16) for e in range(2)]
        for e in range(2):
            for i in range(8): X(f'v_cvt_pk_bf16_f32 v{kb[e]+i}, v{acc[1][e]+2*i}, v{acc[1][e]+2*i+1}')
            X(mfma32(pkk[e], wphi, kb[e], '0')); X(mfma32(pkk[e], wphi+4, kb[e]+4))
        for e in range(2):
            for i in range(8): X(f'v_cvt_pk_bf16_f32 v{vb[e]+i}, v{acc[2][e]+2*i}, v{acc[2][e]+2*i+1}')
        V.free(cs, cx, cw)
        cb = V.get(2); ebuf = V.get(14, 2); tmp = V.get(4); tb = V.get(8, 4)
        ph = kb; tr = acc[1]; kvacc = acc[2]
        for e in range(2):
            X(f'v_mul_f32 v{cb}, {fl(LOG2E)}, v{st_r[e]}')
            softmax_pair(X, pkk[e], cb, ebuf, ph[0], ph[1], tmp, scale=st_r[e])
            for sg in range(2):
                X(mfma32(tr[sg], ph[sg], idf, '0')); X(mfma32(tr[sg], ph[sg]+4, idf+4))
            for sg in range(2):
                for i in range(8): X(f'v_cvt_pk_bf16_f32 v{tb+i}, v{tr[sg]+2*i}, v{tr[sg]+2*i+1}')
                X(mfma32(kvacc[sg], tb, vb[e], '0' if e == 0 else None)); X(mfma32(kvacc[sg], tb+4, vb[e]+4))
        self.weave(X, [lambda i=i: self.dma3(i) for i in range(20)], lead=2, tail=2)
        self.stamp('a_kv')
        lsw = self.lab('swap')
        qb = [tb, idf]
        for i in range(8): A(f'v_cvt_pk_bf16_f32 v{qb[0]+i}, v{acc[0][0]+2*i}, v{acc[0][0]+2*i+1}')
        A(f's_cmp_eq_u32 s{sTP}, 0'); A.branch('s_cbranch_scc1', lsw)
        for r in range(16): A(f'v_swap_b32 v{kvacc[0]+r}, v{kvacc[1]+r}')
        A.label(lsw, True)
        A(f's_lshl_b32 s{sT}, s{sW}, 12\n s_add_u32 s{sT}, s{sT}, {R2 + 32768}\n v_add_u32 v{t}, s{sT}, v{vL16}')
        A(f's_xor_b32 s{sT}, s{sW}, 1\n s_lshl_b32 s{sT}, s{sT}, 12\n s_add_u32 s{sT}, s{sT}, {R2 + 32768}\n v_add_u32 v{t+1}, s{sT}, v{vL16}')
        assert R2 + 32768 >= PHL + 8192
        for i in range(4): A(f'ds_write_b128 v{t}, v[{kvacc[1]+4*i}:{kvacc[1]+4*i+3}] offset:{i*1024}')
        A(mfma32(pkk[0], wphi, qb[0], '0')); A(mfma32(pkk[0], wphi+4, qb[0]+4))
        for i in range(8): A(f'v_cvt_pk_bf16_f32 v{qb[1]+i}, v{acc[0][1]+2*i}, v{acc[0][1]+2*i+1}')
        A.wait(lg=0); A.barrier()
        for i in range(4): A(f'ds_read_b128 v[{kvacc[1]+4*i}:{kvacc[1]+4*i+3}], v{t+1} offset:{i*1024}')
        A(mfma32(pkk[1], wphi, qb[1], '0')); A(mfma32(pkk[1], wphi+4, qb[1]+4))
        A(f's_lshl_b32 s{sT}, s{sHead}, 4\n s_add_u32 s{sT}, s{sT}, s{sRGA}\n s_lshl_b32 s{sT}, s{sT}, 1\n s_add_u32 s{sT}, s{sT}, s{sTP}\n s_lshl_b32 s{sT}, s{sT}, 11\n s_add_u32 s{sT}, s{sT}, {KVP_OFF}')
        for i in range(16): A(f'v_add_f32 v{kvacc[0]+i}, v{kvacc[0]+i}, v{kvacc[1]+i}')
        o = tr[0]
        for i in range(8): A(f'v_cvt_pk_bf16_f32 v{o+i}, v{kvacc[0]+2*i}, v{kvacc[0]+2*i+1}')
        for i in range(2): A(f'buffer_store_dwordx4 v[{o+4*i}:{o+4*i+3}], v{vL16}, s[12:15], s{sT} offen offset:{i*1024} {SC}', tag='st')
        self.stamp(3)
        X = Weave()
        X(f'v_mul_f32 v{cb}, {fl(LOG2E)}, v{st_r[0]}')
        softmax_pair(X, pkk[0], cb, ebuf, self.phq, self.phq + 8, tmp)
        self.weave(X, [lambda i=i: self.dma3(i) for i in range(20, 28)])
        self.publish(0, sId, tag='st')
        self.stamp(4)
        self.setup_r2(3, f's_lshr_b32 s{sT}, s{sLoc}, 2')
        X = Weave()
        X(f'v_mul_f32 v{cb}, {fl(LOG2E)}, v{st_r[1]}')
        softmax_pair(X, pkk[1], cb, ebuf, self.phq + 16, self.phq + 24, tmp)
        self.weave(X, [lambda i=i: self.dma_r2(i) for i in range(14)])
        A.wait_tag('w3'); A.barrier()

    def team_s(self):
        A, V, vl, t, vT31, vH, vL16 = self.A, self.V, self.vl, self.t, self.vT31, self.vH, self.vL16
        sI, sHd, sA, sB, sId = range(S0, S0+5)
        self.common_regs()
        A(f's_sub_u32 s{sI}, s2, 240\n s_lshl_b32 s{sI}, s{sI}, 2\n s_add_u32 s{sI}, s{sI}, s{sW}')
        A(f'v_lshlrev_b32 v{t+6}, 7, v{vl}\n v_cmp_gt_u32 vcc, 49, v{vl}\n v_mov_b32 v{t+7}, {OOB}\n v_cndmask_b32 v{t+6}, v{t+7}, v{t+6}, vcc')
        A(f's_mul_i32 s{sT}, s{sI}, {49*128}')
        self.set_srd(SRD_Q, 6, 448*896)
        self.junk_load(f'buffer_load_dword v{self.vJunk}, v{t+6}, s[20:23], s{sT} offen')
        self.set_srd(SRD_W, 7, 448*3584)
        for i in range(4):
            A(f's_add_u32 s{sT2}, s{sT}, {i*448*896}')
            self.junk_load(f'buffer_load_dword v{self.vJunk}, v{t+6}, s[8:11], s{sT2} offen')
        self.set_srd(SRD_Q, 3, 448*896)
        self.junk_load(f'buffer_load_dword v{self.vJunk}, v{t+6}, s[20:23], s{sT} offen')
        A(f's_mov_b32 s{sT}, 0'); w128_dma_off(A, self.vW128, vl, t, sT)
        self.nonce_begin()
        self.setup_w3_wo()
        A(EXEC56)
        for i in range(28): self.dma3(i, False)
        A(EXEC64)
        self.nonce_end()
        A(f's_lshl_b32 s{sHd}, s{sXcd}, 1\n s_add_u32 s{sHd}, s{sHd}, s{sLoc}\n s_sub_u32 s{sHd}, s{sHd}, 30\n s_add_u32 s{sId}, s{sHd}, 128')
        A.wait(vm=0)
        h = self.poll_begin(0, 16, lambda d: A(f's_lshl_b32 s{sT2}, s{sXcd}, 4\n s_add_u32 s{sT2}, s{sT2}, 128\n v_add_u32 v{d}, s{sT2}, v{vl}'))
        self.poll_end(h, sleep=4)
        self.stamp(5)
        kp = V.get(64); ka = V.get(12, 4)
        A(f's_lshl_b32 s{sA}, s{sHd}, 16\n s_lshl_b32 s{sT}, s{sW}, 10\n s_add_u32 s{sA}, s{sA}, s{sT}\n s_add_u32 s{sA}, s{sA}, {KVP_OFF}')
        for p in range(16):
            A(f'buffer_load_dwordx4 v[{kp+4*p}:{kp+4*p+3}], v{vL16}, s[12:15], s{sA} offen {SC}')
            if p < 15: A(f's_add_u32 s{sA}, s{sA}, 4096')
        A(f's_mov_b32 s{sA}, 0x3f80\n s_mov_b32 s{sB}, 0x3f800000')
        for p in range(16):
            for i in range(4):
                c0 = '0' if p == 0 else f'v{ka+2*i}'; c1 = '0' if p == 0 else f'v{ka+2*i+1}'
                A(f'v_dot2_f32_bf16 v{ka+2*i}, v{kp+4*p+i}, s{sA}, {c0}\n v_dot2_f32_bf16 v{ka+2*i+1}, v{kp+4*p+i}, s{sB}, {c1}')
        for i in range(4): A(f'v_cvt_pk_bf16_f32 v{ka+8+i}, v{ka+2*i}, v{ka+2*i+1}')
        A(f's_lshl_b32 s{sA}, s{sHd}, 12\n s_lshl_b32 s{sT}, s{sW}, 10\n s_add_u32 s{sA}, s{sA}, s{sT}\n s_add_u32 s{sA}, s{sA}, {KVF_OFF}')
        A(f'buffer_store_dwordx4 v[{ka+8}:{ka+11}], v{vL16}, s[12:15], s{sA} offen {SC}')
        self.stamp(7)
        self.publish(1, sId)

    def s34(self):
        A, V, vl, t, vT31, vH, vL16 = self.A, self.V, self.vl, self.t, self.vT31, self.vH, self.vL16
        sRG, sCG, sA, sTile, sId = range(S0, S0+5)
        sTG4, sCG4, sA4, sB4, sTile4, sM1, sM2, sTT, sKH, sXo, sO, sIsA = range(S0+5, S0+17)
        A(f's_lshr_b32 s{sT}, s{sLoc}, 4\n s_lshl_b32 s{sRG}, s{sXcd}, 1\n s_add_u32 s{sRG}, s{sRG}, s{sT}\n s_and_b32 s{sCG}, s{sLoc}, 15')
        A(f's_lshl_b32 s{sTile}, s{sRG}, 2\n s_add_u32 s{sTile}, s{sTile}, s{sW}')
        A(f's_lshl_b32 s{sId}, s{sRG}, 4\n s_add_u32 s{sId}, s{sId}, s{sCG}')
        vWa = [V.get() for f in range(2)]; vWb = [V.get() for f in range(2)]
        A(f'v_bfe_u32 v{t+1}, v{vl}, 2, 2\n v_lshl_add_u32 v{t+1}, v{t+1}, 1, v{vH}\n v_mul_u32_u24 v{t+1}, 224, v{t+1}')
        A(f'v_bfe_u32 v{t+2}, v{vl}, 4, 1\n v_lshlrev_b32 v{t+2}, 5, v{t+2}\n v_and_b32 v{t+3}, 3, v{vl}\n v_lshl_add_u32 v{t+2}, v{t+3}, 3, v{t+2}')
        vCa = V.get(); vCb = V.get()
        A(f's_lshl_b32 s{sT}, s{sW}, 6\n v_add_u32 v{t+3}, s{sT}, v{t+2}\n v_min_u32 v{t+3}, 216, v{t+3}\n v_add_u32 v{vCa}, v{t+3}, v{t+1}\n v_add_u32 v{vCb}, {16*3584}, v{vCa}')
        acc = [V.get(16) for f in range(4)]
        cs = V.get(4)
        fwb = V.get(32)
        fw = [[fwb + 16*b + 4*f for f in range(4)] for b in range(2)]
        cws = [V.get(4) for f in range(4)]; cx = V.get(4)
        fl8 = [r for b in fw for r in b]
        def rdc(n):
            base, o = (vCa, n*3584) if n < 16 else (vCb, (n-16)*3584)
            for sec in range(2): A(f'ds_read_b64_tr_b16 v[{fl8[n%8]+2*sec}:{fl8[n%8]+2*sec+1}], v{base} offset:{o + sec*1792}')
        for n in range(6): rdc(n)
        A(f'v_add_u32 v{vWa[0]}, v{t+2}, v{t+1}\n v_add_u32 v{t+3}, 192, v{t+2}\n v_min_u32 v{t+3}, 216, v{t+3}\n v_add_u32 v{vWa[1]}, v{t+3}, v{t+1}')
        for f in range(2): A(f'v_add_u32 v{vWb[f]}, {16*3584}, v{vWa[f]}')
        vOnes = V.get(4); ones_mask_frag(A, vOnes, vl, t+2)
        def idx(d): A(f's_lshl_b32 s{sT2}, s{sRG}, 3\n v_add_u32 v{d}, s{sT2}, v{vl}')
        for n in range(28):
            A(mfma16(cs, vOnes, fl8[n%8], '0' if n == 0 else None))
            if n + 6 < 28: rdc(n + 6)
            if n == 8: h = self.poll_begin(1, 7, idx)
        A('s_mov_b32 s56, -1\n s_mov_b32 s57, 0')
        A(f's_mul_i32 s{sA}, s{sTile}, {28*1024}\n s_add_u32 s{sA}, s{sA}, {X1_OFF}')
        A(f's_lshl_b32 s{sTG4}, s{sXcd}, 2\n s_and_b32 s{sT}, s{sLoc}, 3\n s_add_u32 s{sTG4}, s{sTG4}, s{sT}\n s_lshr_b32 s{sCG4}, s{sLoc}, 2')
        corr_wfrag(A, cx, cs, t, 's[56:57]')
        A(f'v_lshlrev_b32 v{t}, 3, v0\n v_add_u32 v{t}, {EXL}, v{t}\n ds_write_b64 v{t}, v[{cx}:{cx+1}]')
        for f in range(4): A(f'v_mov_b32 v{cws[f]+2}, 0\n v_mov_b32 v{cws[f]+3}, 0')
        A(f's_and_b32 s{sTT}, s{sW}, 1\n s_lshr_b32 s{sKH}, s{sW}, 1')
        A(f's_lshl_b32 s{sTile4}, s{sTG4}, 1\n s_add_u32 s{sTile4}, s{sTile4}, s{sTT}')
        self.set_srd(SRD_P, 8, 1792*896)
        self.set_srd(SRD_X, 0, 2048*896)
        A(f's_lshl_b32 s{sT}, s{sTT}, 10\n s_mul_i32 s{sM1}, s{sKH}, {24*2048}\n s_add_u32 s{sM1}, s{sM1}, s{sT}')
        A(f's_mul_i32 s{sM2}, s{sKH}, {15*2048}\n s_add_u32 s{sM2}, s{sM2}, s{sT}\n s_add_u32 s{sM2}, s{sM2}, {R2}')
        A(f's_mul_i32 s{sB4}, s{sKH}, {896*896}\n s_mul_i32 s{sT}, s{sTT}, {8*896}\n s_add_u32 s{sB4}, s{sB4}, s{sT}\n s_lshl_b32 s{sT}, s{sCG4}, 7\n s_add_u32 s{sB4}, s{sB4}, s{sT}')
        A(f's_cmp_ge_u32 s{sLoc}, 28\n s_cselect_b32 s{sB4}, 0x40000000, s{sB4}')
        A(f's_sub_u32 s{sIsA}, s{sLoc}, 14')
        NSL = 39
        def dma4(n):
            sl = n % NSL
            if sl < 24: A(f's_add_u32 m0, s{sM1}, {sl*2048}')
            else: A(f's_add_u32 m0, s{sM2}, {(sl-24)*2048}')
            A(f's_add_u32 s{sT3}, s{sB4}, {n*16*896}')
            A(f'buffer_load_dwordx4 v{self.vW128}, s[16:19], s{sT3} offen lds', tag=('w4', n))
        def rd(n):
            out = []
            for f in range(4):
                i = 1 if f == 3 else 0; c = 0 if f == 3 else 64*f
                base, o = (vWa[i], n*3584) if n < 16 else (vWb[i], (n-16)*3584)
                for sec in range(2): out.append(f'ds_read_b64_tr_b16 v[{fw[n&1][f]+2*sec}:{fw[n&1][f]+2*sec+1}], v{base} offset:{o + c + sec*1792}')
            return out
        for x in rd(0): A(x)
        self.poll_end(h)
        self.stamp(9)
        def ld(n):
            if n and n % 4 == 0: A(f's_add_u32 s{sA}, s{sA}, 4096')
            A(f'buffer_load_dwordx4 a[{4*n}:{4*n+3}], v{vL16}, s[12:15], s{sA} offen offset:{(n%4)*1024} {SC}')
        D = 8
        for n in range(D): ld(n)
        A(f'v_lshlrev_b32 v{t+1}, 3, v{vl}\n v_add_u32 v{t+1}, {EXL}, v{t+1}')
        for f in range(4): A(f'ds_read_b64 v[{cws[f]}:{cws[f]+1}], v{t+1} offset:{f*512}')
        stp = V.get(14, 2)
        nld = D
        for n in range(28):
            if n % 4 == 0: self.stamp(f'm3_{n}')
            R = rd(n+1) if n < 27 else []
            z = '0' if n == 0 else None
            for f in range(4):
                A(mfma32(acc[f], fw[n&1][f], ar(4*n, 4), z))
                for x in R[2*f:2*f+2]: A(x)
                if f in (1, 3) and nld < 28: ld(nld); nld += 1
                elif f == 3 and n == 10:
                    A(f's_mul_i32 s{sT}, s{sTile}, {7*512}\n s_add_u32 s{sT}, s{sT}, {ST2_OFF}\n v_lshlrev_b32 v{t}, 3, v{vl}')
                elif f == 3 and 11 <= n < 18:
                    g = n - 11
                    A(f'buffer_load_dwordx2 v[{stp+2*g}:{stp+2*g+1}], v{t}, s[12:15], s{sT} offen offset:{g*512} {SC}')
                elif f == 3 and n == 18:
                    def idx(d):
                        A(f's_lshl_b32 s{sT2}, s{sHP}, 1\n s_add_u32 s{sT2}, s{sT2}, 128\n s_lshl_b32 s{sT3}, s{sRG}, 3\n s_cmp_lt_u32 s{sIsA}, 16\n s_cselect_b32 s{sT2}, s{sT2}, s{sT3}')
                        A(f'v_add_u32 v{d}, s{sT2}, v{vl}')
                    hk = self.poll_begin(1, 2, idx)
                elif f == 3 and n == 23:
                    self.poll_end(hk)
                    A(f's_lshl_b32 s{sT}, s{sHP}, 1\n s_add_u32 s{sT}, s{sT}, s{sKH}\n s_and_b32 s{sT}, s{sT}, 15\n s_lshl_b32 s{sT}, s{sT}, 12\n s_add_u32 s{sT}, s{sT}, {KVF_OFF}')
                elif f in (1, 3) and n in (24, 25):
                    i = (n - 24)*2 + (f >> 1)
                    A(f'buffer_load_dwordx4 a[{112+4*i}:{112+4*i+3}], v{vL16}, s[12:15], s{sT} offen offset:{i*1024} {SC}')
        self.stamp(10)
        A.wait(lg=0); A.barrier()
        V.free(vWa, vWb, vCa, vCb, vOnes, cs)
        for g in range(1, 7): A(pk('v_pk_add_f32', stp, stp, stp+2*g))
        xhalf(A, 'v_add_f32', stp, t); xhalf(A, 'v_add_f32', stp+1, t+1)
        vm, vr_ = stp+2, stp+3
        kk = stp+4; inv = stp+6
        A(f's_mov_b32 s{sT}, {fl(1.0/448)}')
        A(f'v_mul_f32 v{vm}, s{sT}, v{stp}\n v_mul_f32 v{t}, s{sT}, v{stp+1}\n v_fma_f32 v{t}, -v{vm}, v{vm}, v{t}\n v_max_f32 v{t}, 0, v{t}')
        corr_xfrag(A, cx, vm, None, t+1)
        for f in range(4): A(mfma32(acc[f], cws[f], cx))
        A(f'v_add_f32 v{t}, {fl(1e-5)}, v{t}\n v_rsq_f32 v{vr_}, v{t}\n v_mul_f32 v{inv}, v{t}, v{vr_}')
        A(f'v_mul_f32 v{kk}, {fl(GELU_C1)}, v{vr_}\n v_mul_f32 v{t}, v{vr_}, v{vr_}\n v_mul_f32 v{t}, {fl(0.044715)}, v{t}\n v_mul_f32 v{kk+1}, v{t}, v{kk}')
        tt = V.get(16); ob = V.get(32)
        lno = self.lab('noo')
        A.wait(vm=0)
        A(f's_cmp_ge_u32 s{sIsA}, 16'); A.branch('s_cbranch_scc1', lno)
        num = [fwb, fwb + 16]; cb = stp + 8
        for e in range(2):
            for i in range(4): A(mfma32(num[e], ar(112 + 4*i, 4), self.phq + 16*e + 4*i, '0' if i == 0 else None))
        A(f's_lshl_b32 s{sT}, s{sRGA}, 2\n s_lshl_b32 s{sT2}, s{sTT}, 1\n s_add_u32 s{sT}, s{sT}, s{sT2}\n s_lshl_b32 s{sT}, s{sT}, 4')
        A(f's_lshl_b32 s{sT2}, s{sHP}, 1\n s_add_u32 s{sT}, s{sT}, s{sT2}\n s_add_u32 s{sT}, s{sT}, s{sKH}\n s_lshl_b32 s{sT}, s{sT}, 11\n s_add_u32 s{sT}, s{sT}, {O_OFF}')
        for e in range(2):
            n = num[e]; o = self.phq + 8*e
            A(f'v_mov_b32 v{cb}, v{n+12}\n v_mov_b32 v{cb+1}, v{n+12}')
            A(f'v_permlane32_swap_b32 v{cb+1}, v{cb}')
            A(f'v_add_f32 v{cb}, {fl(1e-6)}, v{cb}\n v_rcp_f32 v{cb}, v{cb}')
            for i in range(0, 16, 2): A(pk('v_pk_mul_f32', n+i, n+i, cb, selhi=[1,0]))
            for i in range(8): A(f'v_cvt_pk_bf16_f32 v{o+i}, v{n+2*i}, v{n+2*i+1}')
            A(f'v_cndmask_b32 v{o+6}, 0, v{o+6}, s[56:57]\n v_cndmask_b32 v{o+7}, 0, v{o+7}, s[56:57]')
            if e: A(f's_add_u32 s{sT}, s{sT}, {32*1024}')
            for i in range(2): A(f'buffer_store_dwordx4 v[{o+4*i}:{o+4*i+3}], v{vL16}, s[12:15], s{sT} offen offset:{i*1024} {SC}')
        A.st.vm = []
        A.label(lno, True)
        self.stamp('o_done')
        sH3a, sH3b, sIdO = sA, sO, sXo
        A(f's_mul_i32 s{sH3a}, s{sTile}, {112*1024}\n s_mul_i32 s{sT2}, s{sCG}, {7*1024}\n s_add_u32 s{sH3a}, s{sH3a}, s{sT2}\n s_add_u32 s{sH3a}, s{sH3a}, {H3_OFF}')
        A(f's_add_u32 s{sH3b}, s{sH3a}, 4096')
        A(f's_lshl_b32 s{sIdO}, s{sRGA}, 3\n s_add_u32 s{sIdO}, s{sIdO}, s{sHP}\n s_or_b32 s{sT}, s2, 128\n s_cmp_lt_u32 s{sIsA}, 16\n s_cselect_b32 s{sIdO}, s{sIdO}, s{sT}')
        nd = 0
        for f in range(4):
            Wv = Weave()
            n = 16 if f < 3 else 8
            o = ob + 8*f
            gelu_pack(Wv, acc[f], n, kk, inv, tt, o)
            for i in range(n // 8):
                ks = 2*f + i
                Wv(f'buffer_store_dwordx4 v[{o+4*i}:{o+4*i+3}], v{vL16}, s[12:15], s{sH3a if ks < 4 else sH3b} offen offset:{(ks % 4)*1024} {SC}')
            k = [6, 6, 6, 2][f]
            self.weave(Wv, [lambda i=i: dma4(i) for i in range(nd, nd + k)], tail=1); nd += k
            if f == 0: self.publish(3, sIdO, tag=('w4', 0))
        self.stamp(11)
        lend = self.lab('s4end')
        def idx(d): A(f's_lshr_b32 s{sT2}, s{sTG4}, 1\n s_lshl_b32 s{sT2}, s{sT2}, 3\n v_add_u32 v{d}, s{sT2}, v{vl}')
        ho = self.poll_begin(3, 8, idx)
        while nd < 24: dma4(nd); nd += 1
        self.publish(2, sId, tag='st')
        A(f's_cmp_ge_u32 s{sLoc}, 28'); A(f's_cbranch_scc1 {lend}')
        V.free(acc, fwb, cws, cx, stp, tt, ob)
        vWa = [[V.get() for f in range(2)] for i in range(3)]
        w128_read_addr(A, t+3, vl, t)
        A(f's_lshl_b32 s{sT}, s{sKH}, 6\n v_xor_b32 v{t+3}, s{sT}, v{t+3}')
        for i, (mul, add) in enumerate(((24*2048, 0), (15*2048, R2), (224*128, R2))):
            A(f's_mul_i32 s{sT}, s{sKH}, {mul}\n s_add_u32 s{sT}, s{sT}, {add}\n v_add_u32 v{vWa[i][0]}, s{sT}, v{t+3}\n v_xor_b32 v{vWa[i][1]}, 64, v{vWa[i][0]}')
        acc = [V.get(16), V.get(16)]; sac = [V.get(16), V.get(16)]
        NB = 3
        fw = [[V.get(4) for f in range(2)] for b in range(NB)]
        def rdo(n):
            o = (n >> 1)*28*128 + (n & 1)*2048
            return [f'ds_read_b64_tr_b16 v[{fw[n%NB][f]+2*sec}:{fw[n%NB][f]+2*sec+1}], v{vWa[2][f]} offset:{o + sec*1024}' for f in range(2) for sec in range(2)]
        A(f's_lshl_b32 s{sO}, s{sTile4}, 15\n s_lshl_b32 s{sT}, s{sKH}, 14\n s_add_u32 s{sO}, s{sO}, s{sT}\n s_add_u32 s{sO}, s{sO}, {O_OFF}')
        self.poll_end(ho)
        self.stamp('o_go')
        for n in range(16):
            if n and n % 4 == 0: A(f's_add_u32 s{sO}, s{sO}, 4096')
            A(f'buffer_load_dwordx4 a[{4*n}:{4*n+3}], v{vL16}, s[12:15], s{sO} offen offset:{(n%4)*1024} {SC}')
        self.set_srd(SRD_Q, 9, 2048*896)
        xr = V.get(8, 4); x1r = V.get(8, 4); vXo = V.get()
        A(f'v_mul_u32_u24 v{vXo}, 896, v{vT31}\n v_lshl_add_u32 v{vXo}, v{vH}, 4, v{vXo}')
        A(f's_mul_i32 s{sXo}, s{sTile4}, {32*896}\n s_lshl_b32 s{sT}, s{sCG4}, 7\n s_add_u32 s{sXo}, s{sXo}, s{sT}\n s_lshl_b32 s{sT}, s{sKH}, 6\n s_add_u32 s{sXo}, s{sXo}, s{sT}')
        A(f's_mul_i32 s{sA4}, s{sTile4}, {112*1024}\n s_mul_i32 s{sT}, s{sKH}, {56*1024}\n s_add_u32 s{sA4}, s{sA4}, s{sT}\n s_add_u32 s{sA4}, s{sA4}, {H3_OFF}')
        vEx = V.get(); vEr = V.get()
        A(f's_lshl_b32 s{sT}, s{sW}, 12\n s_add_u32 s{sT}, s{sT}, {R2}\n v_add_u32 v{vEx}, s{sT}, v{vL16}')
        A(f's_xor_b32 s{sT}, s{sW}, 2\n s_lshl_b32 s{sT}, s{sT}, 12\n s_add_u32 s{sT}, s{sT}, {R2}\n v_add_u32 v{vEr}, s{sT}, v{vL16}')
        def idx(d): A(f's_lshr_b32 s{sT2}, s{sTG4}, 1\n s_lshl_b32 s{sT2}, s{sT2}, 4\n v_add_u32 v{d}, s{sT2}, v{vl}')
        for x in rdo(0) + rdo(1): A(x)
        for n in range(16):
            R = rdo(n+2) if n + 2 < 16 else []
            z = '0' if n == 0 else None
            A(mfma32(sac[0], fw[n%NB][0], ar(4*n, 4), z))
            for x in R[:2]: A(x)
            A(mfma32(sac[1], fw[n%NB][1], ar(4*n, 4), z))
            for x in R[2:]: A(x)
            if n == 8: h = self.poll_begin(2, 16, idx)
        self.stamp(12)
        self.poll_end(h)
        self.stamp(13)
        def ld(n):
            if n and n % 4 == 0: A(f's_add_u32 s{sA4}, s{sA4}, 4096')
            A(f'buffer_load_dwordx4 a[{4*n}:{4*n+3}], v{vL16}, s[12:15], s{sA4} offen offset:{(n%4)*1024} {SC}')
        def rd(n):
            sl = n % NSL
            i, o = (0, sl*2048) if sl < 24 else (1, (sl-24)*2048)
            return [f'ds_read_b64_tr_b16 v[{fw[n%NB][f]+2*sec}:{fw[n%NB][f]+2*sec+1}], v{vWa[i][f]} offset:{o + sec*1024}' for f in range(2) for sec in range(2)]
        D = 12
        for n in range(D): ld(n)
        for x in rd(0) + rd(1): A(x)
        for n in range(56):
            if n % 8 == 0: self.stamp(f'm4_{n}')
            if n + 2 == 24:
                A.wait_tag(('w4', 38)); A.barrier()
            if n + 2 == NSL:
                A.wait_tag(('w4', 55)); A.barrier()
            R = rd(n+2) if n + 2 < 56 else []
            z = '0' if n == 0 else None
            A(mfma32(acc[0], fw[n%NB][0], ar(4*n, 4), z))
            for x in R[:2]: A(x)
            if n < 15: dma4(nd); nd += 1
            if 22 <= n and nd < 56: dma4(nd); nd += 1
            A(mfma32(acc[1], fw[n%NB][1], ar(4*n, 4), z))
            for x in R[2:]: A(x)
            if n + D < 56: ld(n + D)
            if 22 <= n and nd < 56 and n % 2 == 0: dma4(nd); nd += 1
            if n == 44:
                A(f's_mul_i32 s{sT}, s{sTile4}, {28*1024}\n s_lshl_b32 s{sT2}, s{sCG4}, 12\n s_add_u32 s{sT}, s{sT}, s{sT2}\n s_lshl_b32 s{sT2}, s{sKH}, 11\n s_add_u32 s{sT}, s{sT}, s{sT2}\n s_add_u32 s{sT}, s{sT}, {X1_OFF}')
                for i in range(2): A(f'buffer_load_dwordx4 v[{x1r+4*i}:{x1r+4*i+3}], v{vL16}, s[12:15], s{sT} offen offset:{i*1024} {SC}')
            if n in (45, 46):
                i = n - 45
                A(f'buffer_load_dwordx4 v[{xr+4*i}:{xr+4*i+3}], v{vXo}, s[4:7], s{sXo} offen offset:{32*i}')
            if 47 <= n < 51:
                i = n - 47
                A(f'ds_write_b128 v{vEx}, v[{sac[1]+4*i}:{sac[1]+4*i+3}] offset:{i*1024}')
        assert nd == 56
        self.stamp(14)
        for i in range(4): A(f'ds_write_b128 v{vEx}, v[{acc[1]+4*i}:{acc[1]+4*i+3}] offset:{32768 + i*1024}')
        xf = V.get(16); y = V.get(16); e = V.get(16); cc = V.get(2)
        unpack_x_tile(A, xr, xf); unpack16(A, x1r, y)
        A.wait(lg=0); A.barrier()
        for i in range(4): A(f'ds_read_b128 v[{acc[1]+4*i}:{acc[1]+4*i+3}], v{vEr} offset:{32768 + i*1024}')
        for i in range(4): A(f'ds_read_b128 v[{sac[1]+4*i}:{sac[1]+4*i+3}], v{vEr} offset:{i*1024}')
        A(f'v_mov_b32 v{cc}, {fl(-LOG2E)}\n v_mov_b32 v{cc+1}, 1.0')
        for i in range(0, 16, 2): A(pk('v_pk_add_f32', y+i, y+i, acc[0]+i))
        for i in range(0, 16, 2): A(pk('v_pk_add_f32', y+i, y+i, acc[1]+i))
        for i in range(0, 16, 2): A(pk('v_pk_mul_f32', e+i, y+i, cc, selhi=[1,0]))
        for i in range(16): A(f'v_exp_f32 v{e+i}, v{e+i}')
        for i in range(0, 16, 2): A(pk('v_pk_add_f32', e+i, e+i, cc, sel=[0,1], selhi=[1,1]))
        for i in range(16): A(f'v_rcp_f32 v{e+i}, v{e+i}')
        for i in range(0, 16, 2): A(pk('v_pk_add_f32', sac[0]+i, sac[0]+i, sac[1]+i))
        for i in range(0, 16, 2): A(pk('v_pk_mul_f32', y+i, y+i, e+i))
        for i in range(0, 16, 2): A(pk('v_pk_fma_f32', y+i, y+i, sac[0]+i, xf+i))
        for i in range(8): A(f'v_cvt_pk_bf16_f32 v{xr+i}, v{y+2*i}, v{y+2*i+1}')
        for j in range(2):
            A(f'v_permlane32_swap_b32 v{xr+4*j}, v{xr+4*j+2}\n v_permlane32_swap_b32 v{xr+4*j+1}, v{xr+4*j+3}')
            A(f'buffer_store_dwordx4 v[{xr+4*j}:{xr+4*j+3}], v{vXo}, s[20:23], s{sXo} offen offset:{32*j}')
        A.raw(f'{lend}:')
        A('s_nop 1')
        self.stamp_flush()

def build(path, as_list=False):
    G = Gen(); G.build(); A = G.A
    out = header()
    if as_list: out.append(f"; @launch kernel={KN} grid=(256,1,1) block=(256,1,1) lds={LDS_BYTES}")
    else: out.append(f"; @launch grid=(256,1,1) block=(256,1,1) lds={LDS_BYTES}")
    out.append('.amdgcn_target "amdgcn-amd-amdhsa--gfx950"\n.text')
    out.append(A.text())
    out.append('.section .rodata,"a"')
    vg = A.maxv + 1; ao = (vg + 3) // 4 * 4
    out.append(f""".p2align 6
.amdhsa_kernel {KN}
  .amdhsa_next_free_vgpr {ao + A.maxa + 1}
  .amdhsa_next_free_sgpr {A.maxs + 1}
  .amdhsa_accum_offset {ao}
  .amdhsa_group_segment_fixed_size 0
  .amdhsa_kernarg_size 96
  .amdhsa_user_sgpr_count 2
  .amdhsa_user_sgpr_kernarg_segment_ptr 1
  .amdhsa_system_sgpr_workgroup_id_x 1
.end_amdhsa_kernel""")
    open(path, 'w').write('\n'.join(out) + '\n')
    print(path, 'vgpr', vg, 'agpr', A.maxa+1, 'sgpr', A.maxs+1, 'nops', A.nops, 'lines', len(A.out))

if __name__ == '__main__':
    Opt.x = ' '.join(sys.argv[1:])
    Opt.stamps = False
    build(f'cdna_kernels/{NAME}.s')
    Opt.stamps = True
    build('dbg2.s', as_list=True)
```
